```python
import torch

def _softmax(x, axis=-1):
    return torch.softmax(x, dim=axis)
def _gelu(x):
    return torch.nn.functional.gelu(x, approximate="tanh")
def _silu(x):
    return torch.nn.functional.silu(x)
def _sigmoid(x):
    return torch.sigmoid(x)
def _layernorm(x, axis=-1, eps=1e-5):
    m = x.mean(dim=axis, keepdim=True)
    v = x.var(dim=axis, keepdim=True, unbiased=False)
    return (x - m) / torch.sqrt(v + eps)
def _scatter_add(tgt, idx, src, axis=0):
    return tgt.clone().index_add_(axis, idx, src)
def _segment_sum(src, seg, n):
    out = torch.zeros((n,) + src.shape[1:], dtype=src.dtype)
    return out.index_add_(0, seg, src)
def _pad(x, pw):
    flat = tuple(v for pair in reversed(pw) for v in pair)
    return torch.nn.functional.pad(x, flat)

kernel_name = 'parallel_sum__ssm_conv_h3__glu_gated_bilinear__prompt'

def setup_inputs():

    _w = (lambda a: (lambda t: t.to(torch.bfloat16) if t.is_floating_point() else t)(torch.as_tensor(a)))
    def _A_setup():
        B, S, D = 1, 2048, 576
        ks = 4
        return {
            "q": _w((lambda *s: torch.randn(*s, dtype=torch.bfloat16) * 0.05)(B, S, D)),
            "k": _w((lambda *s: torch.randn(*s, dtype=torch.bfloat16) * 0.2)(B, S, D)),
            "v": _w((lambda *s: torch.randn(*s, dtype=torch.bfloat16) * 0.2)(B, S, D)),
            "shift_k": _w((lambda *s: torch.randn(*s, dtype=torch.bfloat16) * 0.2)(D, ks) * 0.5),
            "ssm_k": _w((lambda *s: torch.randn(*s, dtype=torch.bfloat16) * 0.4)(D, S) * (1.0 / S ** 0.5)),
            "ssm_D": _w((lambda *s: torch.randn(*s, dtype=torch.bfloat16) * 0.2)(D)),
        }
    _A_in = _A_setup()

    def _B_setup():
        B, S, D, F = 1, 2048, 576, 4608
        return {
            "x": _w((lambda *s: torch.randn(*s, dtype=torch.bfloat16) * 0.05)(B, S, D)),
            "w_gate": _w((lambda *s: torch.randn(*s, dtype=torch.bfloat16) * 0.2)(D, F) * (D ** -0.5)),
            "w_up": _w((lambda *s: torch.randn(*s, dtype=torch.bfloat16) * 0.2)(D, F) * (D ** -0.5)),
            "w_down": _w((lambda *s: torch.randn(*s, dtype=torch.bfloat16) * 0.2)(F, D) * (F ** -0.5)),
        }
    _B_in = _B_setup()

    return {
        "A_q": _A_in["q"],
        "A_k": _A_in["k"],
        "A_v": _A_in["v"],
        "A_shift_k": _A_in["shift_k"],
        "A_ssm_k": _A_in["ssm_k"],
        "A_ssm_D": _A_in["ssm_D"],
        "B_x": _B_in["x"],
        "B_w_gate": _B_in["w_gate"],
        "B_w_up": _B_in["w_up"],
        "B_w_down": _B_in["w_down"],
    }

def reference(A_q, A_k, A_v, A_shift_k, A_ssm_k, A_ssm_D, B_x, B_w_gate, B_w_up, B_w_down):
    def _A_ref(q, k, v, shift_k, ssm_k, ssm_D):
        B, S, D = q.shape
        ks = shift_k.shape[-1]
        k_pad = _pad(k, ((0, 0), (ks - 1, 0), (0, 0)))
        k_shift = torch.zeros_like(k)
        for t in range(ks):
            k_shift = k_shift + k_pad[:, t:t + S, :] * shift_k[:, ks - 1 - t][None, None, :]
        kv = k_shift * v
        L = 2 * S
        kv_pad = _pad(kv, ((0, 0), (0, S), (0, 0)))
        kf_pad = _pad(ssm_k, ((0, 0), (0, S)))
        kv_f = (lambda x, axes=(-2,-1): torch.fft.rfft2(x.float(), dim=axes))(kv_pad[:, None, :, :], axes=(1, 2))
        kf_f = (lambda x, axes=(-2,-1): torch.fft.rfft2(x.float(), dim=axes))(kf_pad[:, None, :], axes=(1, 2))
        kf_f = (lambda x, *d: x.permute(*d))(kf_f, 1, 2, 0)
        y_f = kv_f * kf_f[None, :, :, :]
        y = (lambda x, s, axes=(-2,-1): torch.fft.irfft2(x, s=s, dim=axes).to(torch.bfloat16))(y_f, (1, L), axes=(1, 2))[:, 0, :S, :]
        y = y + kv * ssm_D[None, None, :]
        return q * y

    def _B_ref(x, w_gate, w_up, w_down):
        g = torch.einsum("bsd,df->bsf", x, w_gate)
        u = torch.einsum("bsd,df->bsf", x, w_up)
        h = g * u
        return torch.einsum("bsf,fd->bsd", h, w_down)

    x = A_q
    xn = _layernorm(x, axis=-1)
    return x + _A_ref(xn, A_k, A_v, A_shift_k, A_ssm_k, A_ssm_D) + _B_ref(xn, B_w_gate, B_w_up, B_w_down)
```

```python
class Asm:
    def __init__(self):
        self.lines = []
        self.vm = []
        self.lg = []
    def __call__(self, s):
        import re
        m = re.search(r"offset:(\d+)", s)
        if m:
            n = int(m.group(1))
            if s.startswith("buffer_"):
                assert n < 4096, s
            if s.startswith("ds_"):
                assert n < 65536, s
        self.lines.append("    " + s)
    def label(self, s):
        self.lines.append(s + ":")
    def comment(self, s):
        self.lines.append("    ; " + s)
    def raw(self, s):
        self.lines.append(s)
    def vmem(self, s, tag=None):
        self(s); self.vm.append(tag)
    def lds(self, s, tag=None):
        self(s); self.lg.append(tag)
    def wait_vm(self, tag):
        idx = [i for i, t in enumerate(self.vm) if t == tag]
        if not idx:
            return
        last = idx[-1]
        n = len(self.vm) - 1 - last
        n = min(n, 63)
        self(f"s_waitcnt vmcnt({n})")
        self.vm = self.vm[len(self.vm) - n:] if n > 0 else []
    def wait_lg(self, tag):
        idx = [i for i, t in enumerate(self.lg) if t == tag]
        if not idx:
            return
        last = idx[-1]
        n = len(self.lg) - 1 - last
        n = min(n, 15)
        self(f"s_waitcnt lgkmcnt({n})")
        self.lg = self.lg[len(self.lg) - n:] if n > 0 else []
    def wait_all(self, vm=True, lg=True):
        if vm and lg:
            self("s_waitcnt vmcnt(0) lgkmcnt(0)")
            self.vm = []; self.lg = []
        elif vm:
            self("s_waitcnt vmcnt(0)"); self.vm = []
        elif lg:
            self("s_waitcnt lgkmcnt(0)"); self.lg = []
    def text(self):
        return "\n".join(self.lines) + "\n"

def vr(a, n=1):
    return f"v{a}" if n == 1 else f"v[{a}:{a+n-1}]"
def ar(a, n=1):
    return f"a{a}" if n == 1 else f"a[{a}:{a+n-1}]"
def sr(a, n=1):
    return f"s{a}" if n == 1 else f"s[{a}:{a+n-1}]"

def kernel_header(name):
    return f""".globl {name}
.p2align 8
.type {name},@function
{name}:
"""

def kernel_desc(name, vgpr, sgpr, accum):
    return f""".amdhsa_kernel {name}
  .amdhsa_next_free_vgpr {vgpr}
  .amdhsa_next_free_sgpr {sgpr}
  .amdhsa_accum_offset {accum}
  .amdhsa_group_segment_fixed_size 0
  .amdhsa_kernarg_size 104
  .amdhsa_user_sgpr_count 2
  .amdhsa_user_sgpr_kernarg_segment_ptr 1
  .amdhsa_system_sgpr_workgroup_id_x 1
.end_amdhsa_kernel
"""

KA_Q, KA_K, KA_V, KA_SHIFT, KA_SSMK, KA_SSMD, KA_BX, KA_WG, KA_WU, KA_WD, KA_OUT, KA_DBG, KA_WS = [8*i for i in range(13)]

S, D, F = 2048, 576, 4608
NB_ACT = S * D * 2
NB_W = D * F * 2
WS_XNF = 0
WS_XNR = NB_ACT
WS_Y2 = 2 * NB_ACT
WS_H = 3 * NB_ACT
NB_H = S * F * 2
WS_P = WS_H + NB_H
NB_P = 4 * S * D * 4

def make_srd(a, d, base_lo, nbytes, add=0, tmp=None):
    if add:
        a(f"s_add_u32 s{d}, s{base_lo}, {add}")
        a(f"s_addc_u32 s{d+1}, s{base_lo+1}, 0")
    else:
        a(f"s_mov_b32 s{d}, s{base_lo}")
        a(f"s_mov_b32 s{d+1}, s{base_lo+1}")
    a(f"s_mov_b32 s{d+2}, {nbytes}")
    a(f"s_mov_b32 s{d+3}, 0x00020000")
```

```python
from asmlib import *

def gen_final():
    name = "final_kernel"
    a = Asm()
    a.raw(kernel_header(name))
    NWG = 1152
    a(f"s_cmp_ge_u32 s2, {NWG}")
    a(f"s_cbranch_scc1 L_{name}_exit")
    a("s_load_dwordx2 s[4:5], s[0:1], 0")
    a("s_load_dwordx2 s[6:7], s[0:1], 80")
    a("s_load_dwordx2 s[10:11], s[0:1], 96")
    a("v_lshrrev_b32 v1, 6, v0")
    a("v_and_b32 v2, 63, v0")
    a("v_readfirstlane_b32 s12, v1")
    a("s_lshl_b32 s13, s2, 2")
    a("s_nop 1")
    a("s_add_u32 s13, s13, s12")
    a("s_mov_b32 s14, 0x71c71c8")
    a("s_mul_hi_u32 s15, s13, s14")
    a("s_mul_i32 s16, s15, 36")
    a("s_sub_u32 s16, s13, s16")
    a("s_waitcnt lgkmcnt(0)")
    make_srd(a, 20, 4, NB_ACT)
    make_srd(a, 24, 6, NB_ACT)
    make_srd(a, 28, 10, NB_ACT, add=WS_XNR)
    make_srd(a, 32, 10, NB_ACT, add=WS_Y2)
    make_srd(a, 36, 10, NB_P, add=WS_P)
    a("s_lshl_b32 s17, s13, 10")
    a("v_lshlrev_b32 v3, 4, v2")
    a("v_add_u32 v3, s17, v3")
    for sp in range(4):
        a(f"s_mov_b32 s18, {sp*4718592}")
        a.vmem(f"buffer_load_dwordx4 v[{8+4*sp}:{11+4*sp}], v3, s[36:39], s18 offen")
    a("v_and_b32 v4, 15, v2")
    a("s_lshl_b32 s17, s15, 4")
    a("v_add_u32 v4, s17, v4")
    a("s_movk_i32 s18, 1152")
    a("v_mul_lo_u32 v4, v4, s18")
    a("v_lshrrev_b32 v5, 4, v2")
    a("v_lshl_add_u32 v4, v5, 3, v4")
    a("s_lshl_b32 s17, s16, 5")
    a("v_add_u32 v4, s17, v4")
    a.vmem("buffer_load_dwordx2 v[24:25], v4, s[20:23], 0 offen")
    a.vmem("buffer_load_dwordx2 v[26:27], v4, s[28:31], 0 offen")
    a.vmem("buffer_load_dwordx2 v[28:29], v4, s[32:35], 0 offen")
    a.wait_all()
    for r in range(4):
        a(f"v_add_f32 v{8+r}, v{8+r}, v{12+r}")
        a(f"v_add_f32 v{16+r}, v{16+r}, v{20+r}")
        a(f"v_add_f32 v{8+r}, v{8+r}, v{16+r}")
    a("v_cvt_pk_bf16_f32 v12, v8, v9")
    a("v_cvt_pk_bf16_f32 v13, v10, v11")
    for hh in range(2):
        a(f"v_lshlrev_b32 v30, 16, v{26+hh}")
        a(f"v_and_b32 v31, 0xffff0000, v{26+hh}")
        a(f"v_lshlrev_b32 v32, 16, v{28+hh}")
        a(f"v_and_b32 v33, 0xffff0000, v{28+hh}")
        a("v_mul_f32 v30, v30, v32")
        a("v_mul_f32 v31, v31, v33")
        a("v_cvt_pk_bf16_f32 v34, v30, v31")
        a("v_lshlrev_b32 v30, 16, v34")
        a("v_and_b32 v31, 0xffff0000, v34")
        a(f"v_lshlrev_b32 v32, 16, v{24+hh}")
        a(f"v_and_b32 v33, 0xffff0000, v{24+hh}")
        a("v_add_f32 v30, v30, v32")
        a("v_add_f32 v31, v31, v33")
        a("v_cvt_pk_bf16_f32 v34, v30, v31")
        a("v_lshlrev_b32 v30, 16, v34")
        a("v_and_b32 v31, 0xffff0000, v34")
        a(f"v_lshlrev_b32 v32, 16, v{12+hh}")
        a(f"v_and_b32 v33, 0xffff0000, v{12+hh}")
        a("v_add_f32 v30, v30, v32")
        a("v_add_f32 v31, v31, v33")
        a(f"v_cvt_pk_bf16_f32 v{36+hh}, v30, v31")
    a.vmem("buffer_store_dwordx2 v[36:37], v4, s[24:27], 0 offen")
    a.label(f"L_{name}_exit")
    a("s_endpgm")
    return a.text(), kernel_desc(name, 40, 48, 40), f"; @launch kernel={name} grid=({NWG},1,1) block=(256,1,1) lds=0"
```

```python
from asmlib import *

STAGE = 36864
RING = 4
NST = 9
GEMM_LDS = STAGE * RING

def gen_gemm(which):
    g1 = (which == 1)
    name = "gemm1_kernel" if g1 else "gemm2_kernel"
    RT = 4 if g1 else 2
    NM = 2 if g1 else 1
    KS = 2 if g1 else 4
    CT = 9
    PA = 3 if g1 else 7
    PB = 2 if g1 else 6
    NSTEP = NST * KS
    a = Asm()
    a.raw(kernel_header(name))
    a("s_cmp_ge_u32 s2, 256")
    a(f"s_cbranch_scc1 L_{name}_exit")
    a("s_load_dwordx4 s[4:7], s[0:1], 56")
    a("s_load_dwordx2 s[8:9], s[0:1], 72")
    a("s_load_dwordx2 s[10:11], s[0:1], 96")
    a("s_and_b32 s12, s2, 7")
    a("s_lshr_b32 s13, s2, 3")
    if g1:
        a("s_and_b32 s14, s13, 3")
        a("s_lshl_b32 s15, s12, 2")
        a("s_add_u32 s14, s14, s15")
        a("s_lshr_b32 s15, s13, 2")
    else:
        a("s_and_b32 s14, s13, 3")
        a("s_and_b32 s15, s12, 1")
        a("s_lshl_b32 s15, s15, 3")
        a("s_lshr_b32 s16, s13, 2")
        a("s_add_u32 s15, s15, s16")
        a("s_lshr_b32 s16, s12, 1")
    a("v_lshrrev_b32 v1, 6, v0")
    a("v_and_b32 v2, 63, v0")
    a("v_readfirstlane_b32 s17, v1")
    a("s_waitcnt lgkmcnt(0)")
    if g1:
        a("s_cmp_ge_u32 s17, 2")
        a("s_cselect_b32 s20, s6, s4")
        a("s_cselect_b32 s21, s7, s5")
        a(f"s_mov_b32 s22, {NB_W}")
        a("s_mov_b32 s23, 0x00020000")
        make_srd(a, 24, 10, NB_ACT, add=WS_XNF)
        make_srd(a, 28, 10, NB_H, add=WS_H)
    else:
        make_srd(a, 20, 8, NB_W)
        make_srd(a, 24, 10, NB_H, add=WS_H)
        make_srd(a, 28, 10, NB_P, add=WS_P)
    VD = 8
    rowbytes = 9216 if g1 else 1152
    a("s_mul_i32 s18, s14, 288")
    if not g1:
        a("s_mul_i32 s19, s16, %d" % (1152 * 1152))
        a("s_add_u32 s18, s18, s19")
    if g1:
        a("s_and_b32 s19, s17, 1")
    else:
        a("s_mov_b32 s19, s17")
    a("s_mul_i32 s19, s19, 576")
    a("s_movk_i32 s32, 3641")
    a("s_movk_i32 s33, 18")
    a(f"s_mov_b32 s34, {rowbytes}")
    for j in range(9):
        a(f"v_add_u32 v3, s19, v2")
        if j:
            a(f"v_add_u32 v3, {64*j}, v3")
        a("v_mul_lo_u32 v4, v3, s32")
        a("v_lshrrev_b32 v4, 16, v4")
        a("v_mul_lo_u32 v5, v4, s33")
        a("v_sub_u32 v5, v3, v5")
        if g1:
            a("v_and_b32 v6, 0xe3, v4")
            a("v_bfe_u32 v7, v4, 2, 2")
            a("v_lshl_add_u32 v6, v7, 3, v6")
            a("v_bfe_u32 v7, v4, 4, 1")
            a("v_lshl_add_u32 v4, v7, 2, v6")
        a("v_mul_lo_u32 v4, v4, s34")
        a("v_lshl_add_u32 v4, v5, 4, v4")
        a(f"v_add_u32 v{VD+j}, s18, v4")
    a("s_mul_i32 s35, s17, 9216")
    VA = 17
    if g1:
        a("s_lshl_b32 s36, s15, 4")
        a("s_lshl_b32 s37, s17, 2")
        a("s_add_u32 s36, s36, s37")
        a("s_mul_i32 s36, s36, 18432")
        astride = 18432
    else:
        a("s_lshl_b32 s36, s15, 3")
        a("s_lshl_b32 s37, s17, 1")
        a("s_add_u32 s36, s36, s37")
        a("s_mul_i32 s36, s36, 147456")
        a("s_mul_i32 s37, s16, 36864")
        a("s_add_u32 s36, s36, s37")
        astride = 147456
    a("v_lshlrev_b32 v3, 4, v2")
    a(f"v_add_u32 v{VA}, s36, v3")
    for rt in range(1, RT):
        a(f"v_add_u32 v{VA+rt}, {astride*rt}, v{VA}")
    VB = 21
    a("v_lshrrev_b32 v3, 4, v2")
    a("v_bfe_u32 v4, v2, 2, 2")
    a("v_lshl_add_u32 v3, v3, 2, v4")
    a("s_movk_i32 s37, 288")
    a("v_mul_lo_u32 v3, v3, s37")
    a("v_and_b32 v4, 3, v2")
    a(f"v_lshl_add_u32 v{VB}, v4, 3, v3")
    for s in range(1, RING):
        a(f"v_add_u32 v{VB+s}, {STAGE*s}, v{VB}")
    AF = 28
    NAF = (PA + 1) * RT * 4
    BF = AF + NAF
    NBF = (PB + 1) * NM * 4
    VACC = BF + NBF
    ntile = RT * CT * NM
    def acc(rt, ct, m):
        idx = (ct * NM + m) * RT + rt
        if idx < 64:
            return ("a", 4 * idx)
        return ("v", VACC + 4 * (idx - 64))
    def accs(rt, ct, m):
        k, b = acc(rt, ct, m)
        return f"{k}[{b}:{b+3}]"
    nvacc = max(0, ntile - 64) * 4
    VT = VACC + nvacc
    stage_stride = (64 * 9216) if g1 else (128 * 1152)

    def dma_issue(st, j):
        slot = st % RING
        a(f"s_add_u32 m0, s35, {slot*STAGE + j*1024}")
        return f"buffer_load_dwordx4 v{VD+j}, s[20:23], s38 offen lds"
    def a_load(step, rt):
        b = AF + (step % (PA + 1)) * RT * 4 + rt * 4
        return f"buffer_load_dwordx4 v[{b}:{b+3}], v{VA+rt}, s[24:27], s39 offen"
    for st in range(3):
        a(f"s_mov_b32 s38, {st*stage_stride}")
        for j in range(9):
            ins = dma_issue(st, j)
            a("s_nop 0")
            a.vmem(ins, f"D{st}")
        if st == 0:
            for t in range(PA):
                a(f"s_movk_i32 s39, {t*1024}")
                for rt in range(RT):
                    a.vmem(a_load(t, rt), f"A{t}")
    NG = NSTEP * CT
    def b_reads(G):
        step, ct = divmod(G, CT)
        st, ks = divmod(step, KS)
        slot = st % RING
        buf = BF + (G % (PB + 1)) * NM * 4
        out = []
        for m in range(NM):
            for half in range(2):
                off = m * 18432 + ks * 9216 + half * 4608 + ct * 32
                out.append(f"ds_read_b64_tr_b16 v[{buf+4*m+2*half}:{buf+4*m+2*half+1}], v{VB+slot} offset:{off}")
        return out
    a.wait_vm("D0")
    a("s_barrier")
    for G in range(PB):
        for ins in b_reads(G):
            a.lds(ins, f"B{G}")
    pend_dma = []
    GPS = KS * CT
    BAR_AHEAD = PB + 1
    for G in range(NG):
        step, ct = divmod(G, CT)
        st = step // KS
        fill = []
        if ct == 0:
            a.wait_vm(f"A{step}")
            if step + PA < NSTEP:
                fill.append(("s", f"s_movk_i32 s39, {(step+PA)*1024}") if (step+PA)*1024 < 32768 else ("s", f"s_mov_b32 s39, {(step+PA)*1024}"))
                for rt in range(RT):
                    fill.append(("v", a_load(step + PA, rt), f"A{step+PA}"))
        nxt = st + 1
        if nxt < NST and G == nxt * GPS - BAR_AHEAD:
            a.wait_vm(f"D{nxt}")
            a("s_barrier")
            if st + 3 < NST:
                pend_dma = [(st + 3, j) for j in range(9)]
                fill.append(("s", f"s_mov_b32 s38, {(st+3)*stage_stride}"))
        if G + PB < NG:
            for ins in b_reads(G + PB):
                fill.append(("l", ins, f"B{G+PB}"))
        if pend_dma:
            for _ in range(1 if g1 else 1):
                if pend_dma:
                    s_, j_ = pend_dma.pop(0)
                    fill.append(("d", s_, j_))
        a.wait_lg(f"B{G}")
        buf = BF + (G % (PB + 1)) * NM * 4
        abuf = AF + (step % (PA + 1)) * RT * 4
        mf = []
        for m in range(NM):
            for rt in range(RT):
                c = accs(rt, ct, m) if step > 0 else "0"
                mf.append(f"v_mfma_f32_16x16x32_bf16 {accs(rt,ct,m)}, v[{buf+4*m}:{buf+4*m+3}], v[{abuf+4*rt}:{abuf+4*rt+3}], {c}")
        per = -(-len(fill) // len(mf)) if fill else 0
        fi = 0
        for ins in mf:
            a(ins)
            for _ in range(per):
                if fi >= len(fill):
                    break
                f = fill[fi]; fi += 1
                if f[0] == "s":
                    a(f[1])
                elif f[0] == "v":
                    a.vmem(f[1], f[2])
                elif f[0] == "l":
                    a.lds(f[1], f[2])
                elif f[0] == "d":
                    ins2 = dma_issue(f[1], f[2])
                    a("s_nop 0")
                    a.vmem(ins2, f"D{f[1]}")
    a("s_nop 7")
    a("s_nop 7")
    def rd(dst, rt, ct, m):
        k, b = acc(rt, ct, m)
        for r in range(4):
            if k == "a":
                a(f"v_accvgpr_read_b32 v{dst+r}, a{b+r}")
            else:
                a(f"v_mov_b32 v{dst+r}, v{b+r}")
    if g1:
        a("s_lshl_b32 s36, s15, 4")
        a("s_lshl_b32 s37, s17, 2")
        a("s_add_u32 s36, s36, s37")
        a("s_mul_i32 s36, s36, 147456")
        a("s_mul_i32 s37, s14, 9")
        a("s_lshr_b32 s40, s37, 1")
        a("s_lshl_b32 s40, s40, 10")
        a("s_add_u32 s36, s36, s40")
        a("v_lshlrev_b32 v3, 4, v2")
        a("v_add_u32 v3, s36, v3")
        a("s_and_b32 s37, s37, 1")
        a("s_cmp_eq_u32 s37, 1")
        a(f"s_cbranch_scc1 L_{name}_odd")
        for par in range(2):
            if par == 1:
                a.label(f"L_{name}_odd")
            for rt in range(RT):
                for ct in range(CT):
                    T = par + ct
                    half = T & 1
                    o = VT + 16 + 2 * half
                    rd(VT, rt, ct, 0)
                    rd(VT + 4, rt, ct, 1)
                    a(f"v_cvt_pk_bf16_f32 v{VT+8}, v{VT}, v{VT+1}")
                    a(f"v_cvt_pk_bf16_f32 v{VT+9}, v{VT+2}, v{VT+3}")
                    a(f"v_cvt_pk_bf16_f32 v{VT+10}, v{VT+4}, v{VT+5}")
                    a(f"v_cvt_pk_bf16_f32 v{VT+11}, v{VT+6}, v{VT+7}")
                    for hh in range(2):
                        a(f"v_lshlrev_b32 v{VT}, 16, v{VT+8+hh}")
                        a(f"v_and_b32 v{VT+1}, 0xffff0000, v{VT+8+hh}")
                        a(f"v_lshlrev_b32 v{VT+2}, 16, v{VT+10+hh}")
                        a(f"v_and_b32 v{VT+3}, 0xffff0000, v{VT+10+hh}")
                        a(f"v_mul_f32 v{VT}, v{VT}, v{VT+2}")
                        a(f"v_mul_f32 v{VT+1}, v{VT+1}, v{VT+3}")
                        a(f"v_cvt_pk_bf16_f32 v{o+hh}, v{VT}, v{VT+1}")
                    kb = T >> 1
                    a(f"s_mov_b32 s41, {rt*147456 + kb*1024}")
                    if half == 1 and ct > 0:
                        a.vmem(f"buffer_store_dwordx4 v[{VT+16}:{VT+19}], v3, s[28:31], s41 offen")
                        a("s_nop 1")
                    elif half == 1 and ct == 0:
                        a.vmem(f"buffer_store_dwordx2 v[{VT+18}:{VT+19}], v3, s[28:31], s41 offen offset:8")
                        a("s_nop 1")
                    elif half == 0 and ct == CT - 1:
                        a.vmem(f"buffer_store_dwordx2 v[{VT+16}:{VT+17}], v3, s[28:31], s41 offen")
                        a("s_nop 1")
            a("s_endpgm")
    else:
        a("s_lshl_b32 s36, s16, 7")
        a("s_lshl_b32 s37, s15, 3")
        a("s_add_u32 s36, s36, s37")
        a("s_lshl_b32 s37, s17, 1")
        a("s_add_u32 s36, s36, s37")
        a("s_mul_i32 s36, s36, 36864")
        a("s_mul_i32 s37, s14, 9216")
        a("s_add_u32 s36, s36, s37")
        a("v_lshlrev_b32 v3, 4, v2")
        a("v_add_u32 v3, s36, v3")
        for rt in range(RT):
            for ct in range(CT):
                k, b = acc(rt, ct, 0)
                off = rt * 36864 + ct * 1024
                a(f"s_mov_b32 s41, {off}")
                a.vmem(f"buffer_store_dwordx4 {k}[{b}:{b+3}], v3, s[28:31], s41 offen")
        a("s_endpgm")
    a.label(f"L_{name}_exit")
    a("s_endpgm")
    nv = VT + 24
    nv = (nv + 3) // 4 * 4
    nacc = min(ntile, 64) * 4
    return a.text(), kernel_desc(name, nv + nacc, 96, nv), f"; @launch kernel={name} grid=(256,1,1) block=(256,1,1) lds={GEMM_LDS}"
```

```python
from asmlib import *

N_CONV_WG = 144
N_LN_WG = 32
CH_STRIDE = 21248
COPY_STRIDE = 4160
XB_OFF = 16640
PREP_LDS = 4 * CH_STRIDE

def dpp_sum8(a, v, t):
    a("s_nop 1")
    a(f"v_add_f32_dpp v{t}, v{v}, v{v} quad_perm:[1,0,3,2] row_mask:0xf bank_mask:0xf")
    a("s_nop 1")
    a(f"v_add_f32_dpp v{v}, v{t}, v{t} quad_perm:[2,3,0,1] row_mask:0xf bank_mask:0xf")
    a("s_nop 1")
    a(f"v_add_f32_dpp v{t}, v{v}, v{v} row_half_mirror row_mask:0xf bank_mask:0xf")
    a(f"v_mov_b32 v{v}, v{t}")

def div_by_576(a, v, t0, t1):
    a(f"v_mul_f32 v{t0}, s70, v{v}")
    a(f"v_fma_f32 v{t1}, -v{t0}, s71, v{v}")
    a(f"v_fma_f32 v{v}, v{t1}, s70, v{t0}")

def round_bf16(a, v):
    a(f"v_cvt_pk_bf16_f32 v{v}, v{v}, v{v}")
    a(f"v_lshlrev_b32 v{v}, 16, v{v}")

def gen_ln(a):
    a.comment("---------------- LayerNorm path: 8 rows per wave ----------------")
    make_srd(a, 20, 4, NB_ACT)
    make_srd(a, 24, 16, NB_ACT, add=WS_XNF)
    make_srd(a, 28, 16, NB_ACT, add=WS_XNR)
    a("s_mov_b32 s70, 0x3ae38e39")
    a("s_mov_b32 s71, 0x44100000")
    a("s_mov_b32 s72, 0x3727c5ac")
    a(f"s_sub_u32 s3, s2, {N_CONV_WG}")
    a("s_lshl_b32 s3, s3, 6")
    a("v_lshrrev_b32 v3, 3, v0")
    a("v_add_u32 v3, s3, v3")
    a("v_and_b32 v4, 7, v0")
    a("s_movk_i32 s73, 1152")
    a("v_mul_lo_u32 v5, v3, s73")
    a("v_lshl_add_u32 v5, v4, 4, v5")
    for i in range(9):
        a.vmem(f"buffer_load_dwordx4 v[{8+4*i}:{11+4*i}], v5, s[20:23], 0 offen offset:{128*i}")
    a("v_lshrrev_b32 v6, 4, v3")
    a("s_movk_i32 s73, 18432")
    a("v_mul_lo_u32 v6, v6, s73")
    a("v_lshrrev_b32 v7, 2, v4")
    a("v_lshl_add_u32 v6, v7, 10, v6")
    a("v_and_b32 v7, 3, v4")
    a("v_lshl_add_u32 v6, v7, 8, v6")
    a("v_and_b32 v7, 15, v3")
    a("v_lshl_add_u32 v6, v7, 4, v6")
    a.wait_all()
    X = 44
    for d in range(36):
        a(f"v_lshlrev_b32 v{X+2*d}, 16, v{8+d}")
        a(f"v_and_b32 v{X+2*d+1}, 0xffff0000, v{8+d}")
    for k in range(4):
        a(f"v_add_f32 v{116+k}, v{X+k}, v{X+4+k}")
    for e in range(8, 72):
        a(f"v_add_f32 v{116+(e&3)}, v{116+(e&3)}, v{X+e}")
    a("v_add_f32 v116, v116, v117")
    a("v_add_f32 v118, v118, v119")
    a("v_add_f32 v116, v116, v118")
    dpp_sum8(a, 116, 117)
    div_by_576(a, 116, 117, 118)
    for k in range(4):
        a(f"v_mov_b32 v{120+k}, 0")
    for e in range(72):
        a(f"v_sub_f32 v124, v{X+e}, v116")
        a(f"v_fmac_f32 v{120+(e&3)}, v124, v124")
    a("v_add_f32 v120, v120, v121")
    a("v_add_f32 v122, v122, v123")
    a("v_add_f32 v120, v120, v122")
    dpp_sum8(a, 120, 121)
    div_by_576(a, 120, 121, 122)
    round_bf16(a, 120)
    round_bf16(a, 116)
    a("v_add_f32 v120, s72, v120")
    round_bf16(a, 120)
    a("v_sqrt_f32 v120, v120")
    a("s_nop 0")
    round_bf16(a, 120)
    a("v_rcp_f32 v121, v120")
    a("s_nop 0")
    a("v_fma_f32 v122, -v120, v121, 1.0")
    a("v_fma_f32 v121, v122, v121, v121")
    for d in range(36):
        x0, x1 = X + 2*d, X + 2*d + 1
        a(f"v_sub_f32 v{x0}, v{x0}, v116")
        a(f"v_sub_f32 v{x1}, v{x1}, v116")
        a(f"v_cvt_pk_bf16_f32 v124, v{x0}, v{x1}")
        a(f"v_lshlrev_b32 v{x0}, 16, v124")
        a(f"v_and_b32 v{x1}, 0xffff0000, v124")
        a(f"v_mul_f32 v125, v{x0}, v121")
        a(f"v_mul_f32 v126, v{x1}, v121")
        a(f"v_fma_f32 v{x0}, -v125, v120, v{x0}")
        a(f"v_fma_f32 v{x1}, -v126, v120, v{x1}")
        a(f"v_fma_f32 v125, v{x0}, v121, v125")
        a(f"v_fma_f32 v126, v{x1}, v121, v126")
        a(f"v_cvt_pk_bf16_f32 v{8+d}, v125, v126")
    for i in range(9):
        a.vmem(f"buffer_store_dwordx4 v[{8+4*i}:{11+4*i}], v5, s[28:31], 0 offen offset:{128*i}")
        a(f"s_movk_i32 s73, {2048*i}")
        a.vmem(f"buffer_store_dwordx4 v[{8+4*i}:{11+4*i}], v6, s[24:27], s73 offen")
    a("s_endpgm")

def gen_conv(a):
    a.comment("---------------- conv path: 4 channels per WG ----------------")
    make_srd(a, 20, 6, NB_ACT)
    make_srd(a, 24, 8, NB_ACT)
    make_srd(a, 28, 12, NB_ACT)
    make_srd(a, 32, 16, NB_ACT, add=WS_Y2)
    a("s_lshl_b32 s3, s2, 5")
    a("s_add_u32 s10, s10, s3")
    a("s_addc_u32 s11, s11, 0")
    a("s_load_dwordx8 s[40:47], s[10:11], 0")
    a("s_lshl_b32 s3, s2, 3")
    a("s_add_u32 s14, s14, s3")
    a("s_addc_u32 s15, s15, 0")
    a("s_load_dwordx2 s[64:65], s[14:15], 0")
    a("s_lshl_b32 s36, s2, 3")
    a("s_movk_i32 s73, 4608")
    a("v_mul_lo_u32 v1, v0, s73")
    a("v_add_u32 v1, s36, v1")
    a("v_subrev_u32 v2, 3456, v1")
    a("v_cmp_eq_u32 vcc, 0, v0")
    a("v_mov_b32 v3, 0x7fffff00")
    a("s_nop 0")
    a("v_cndmask_b32 v2, v2, v3, vcc")
    for r in range(3):
        a.vmem(f"buffer_load_dwordx2 v[{8+2*r}:{9+2*r}], v2, s[20:23], 0 offen offset:{1152*r}")
    for r in range(3, 7):
        a.vmem(f"buffer_load_dwordx2 v[{8+2*r}:{9+2*r}], v1, s[20:23], 0 offen offset:{1152*(r-3)}")
    for r in range(4):
        a.vmem(f"buffer_load_dwordx2 v[{22+2*r}:{23+2*r}], v1, s[24:27], 0 offen offset:{1152*r}")
    a("v_lshrrev_b32 v4, 7, v0")
    a("v_and_b32 v5, 127, v0")
    a("s_lshl_b32 s37, s2, 14")
    a("v_lshlrev_b32 v6, 12, v4")
    a("v_add_u32 v6, s37, v6")
    a("v_lshlrev_b32 v7, 4, v5")
    a("v_add_u32 v7, v7, v6")
    a("v_subrev_u32 v7, 32, v7")
    a("v_cmp_gt_u32 vcc, 2, v5")
    a("s_nop 1")
    a("v_cndmask_b32 v30, v7, v6, vcc")
    a("v_add_u32 v31, 4, v7")
    a("v_cndmask_b32 v31, v31, v6, vcc")
    a("v_add_u32 v76, 8, v7")
    a("v_cndmask_b32 v76, v76, v6, vcc")
    HC = 128
    a.vmem(f"buffer_load_dwordx4 v[{HC}:{HC+3}], v30, s[28:31], 0 offen", "h0")
    a.vmem(f"buffer_load_dwordx4 v[{HC+4}:{HC+7}], v31, s[28:31], 0 offen", "h0")
    a.vmem(f"buffer_load_dwordx4 v[{HC+8}:{HC+11}], v76, s[28:31], 0 offen", "h0")
    a("s_movk_i32 s73, 4096")
    for p in (1, 2):
        for e in range(3):
            so, io = ("0", 2048) if p == 1 else ("s73", 0)
            a.vmem(f"buffer_load_dwordx4 v[{HC+12*p+4*e}:{HC+12*p+4*e+3}], v7, s[28:31], {so} offen offset:{io+4*e}", f"h{p}")
    a("s_waitcnt lgkmcnt(0)")
    for c in range(4):
        a(f"s_lshl_b32 s{48+4*c}, s{40+2*c}, 16")
        a(f"s_and_b32 s{49+4*c}, s{40+2*c}, 0xffff0000")
        a(f"s_lshl_b32 s{50+4*c}, s{41+2*c}, 16")
        a(f"s_and_b32 s{51+4*c}, s{41+2*c}, 0xffff0000")
    a("s_lshl_b32 s66, s64, 16")
    a("s_and_b32 s67, s64, 0xffff0000")
    a("s_lshl_b32 s68, s65, 16")
    a("s_and_b32 s69, s65, 0xffff0000")
    a("s_waitcnt vmcnt(9)")
    a.vm = a.vm[-9:]
    K = 32
    V = 60
    for r in range(7):
        for hh in range(2):
            a(f"v_lshlrev_b32 v{K+4*r+2*hh}, 16, v{8+2*r+hh}")
            a(f"v_and_b32 v{K+4*r+2*hh+1}, 0xffff0000, v{8+2*r+hh}")
    for r in range(4):
        for hh in range(2):
            a(f"v_lshlrev_b32 v{V+4*r+2*hh}, 16, v{22+2*r+hh}")
            a(f"v_and_b32 v{V+4*r+2*hh+1}, 0xffff0000, v{22+2*r+hh}")
    a("v_lshlrev_b32 v77, 3, v0")
    a(f"v_sub_u32 v77, {XB_OFF+4088}, v77")
    for c in range(4):
        for pr, (ta, tb) in enumerate(((3, 2), (1, 0))):
            A0, A1, T0, T1, PK = 78, 79, 80, 81, 82
            for tau in range(4):
                w = 48 + 4*c + (3 - tau)
                dst0, dst1 = (A0, A1) if tau == 0 else (T0, T1)
                a(f"v_mul_f32 v{dst0}, s{w}, v{K+4*(ta+tau)+c}")
                a(f"v_mul_f32 v{dst1}, s{w}, v{K+4*(tb+tau)+c}")
                a(f"v_cvt_pk_bf16_f32 v{PK}, v{dst0}, v{dst1}")
                a(f"v_lshlrev_b32 v{dst0}, 16, v{PK}")
                a(f"v_and_b32 v{dst1}, 0xffff0000, v{PK}")
                if tau > 0:
                    a(f"v_add_f32 v{A0}, v{A0}, v{T0}")
                    a(f"v_add_f32 v{A1}, v{A1}, v{T1}")
                    a(f"v_cvt_pk_bf16_f32 v{PK}, v{A0}, v{A1}")
                    a(f"v_lshlrev_b32 v{A0}, 16, v{PK}")
                    a(f"v_and_b32 v{A1}, 0xffff0000, v{PK}")
            a(f"v_mul_f32 v{A0}, v{A0}, v{V+4*ta+c}")
            a(f"v_mul_f32 v{A1}, v{A1}, v{V+4*tb+c}")
            a(f"v_cvt_pk_bf16_f32 v{84+pr}, v{A0}, v{A1}")
        a.lds(f"ds_write_b64 v77, v[84:85] offset:{c*CH_STRIDE}")
        a("s_nop 0")
    a("v_mov_b32 v86, 0")
    a("v_mov_b32 v87, 0")
    a("v_lshlrev_b32 v88, 3, v0")
    a(f"v_add_u32 v88, {XB_OFF+4096}, v88")
    a("v_cmp_gt_u32 vcc, 64, v0")
    a("s_and_saveexec_b64 s[74:75], vcc")
    for c in range(4):
        a.lds(f"ds_write_b64 v88, v[86:87] offset:{c*CH_STRIDE}")
    a("s_mov_b64 exec, s[74:75]")
    a("s_movk_i32 s73, %d" % CH_STRIDE)
    a("v_mul_lo_u32 v89, v4, s73")
    a("v_lshl_add_u32 v89, v5, 4, v89")
    for p in range(3):
        a.wait_vm(f"h{p}")
        Dr, Er, Fr = HC+12*p, HC+12*p+4, HC+12*p+8
        if p == 0:
            a("v_cmp_gt_u32 vcc, 2, v5")
            a("v_cmp_eq_u32 s[76:77], 1, v5")
            a("v_mov_b32 v90, 0")
            a("s_nop 0")
            a(f"v_cndmask_b32 v91, v90, v{Fr+1}, s[76:77]")
            a(f"v_cndmask_b32 v{Fr+3}, v{Fr+3}, v91, vcc")
            a(f"v_cndmask_b32 v91, v90, v{Fr+0}, s[76:77]")
            a(f"v_cndmask_b32 v{Fr+2}, v{Fr+2}, v91, vcc")
            a(f"v_cndmask_b32 v{Fr+1}, v{Fr+1}, v90, vcc")
            a(f"v_cndmask_b32 v{Fr+0}, v{Fr+0}, v90, vcc")
            a(f"v_cndmask_b32 v91, v90, v{Er+0}, s[76:77]")
            a(f"v_cndmask_b32 v{Er+3}, v{Er+3}, v91, vcc")
            for m in range(3):
                a(f"v_cndmask_b32 v{Er+m}, v{Er+m}, v90, vcc")
            for m in range(4):
                a(f"v_cndmask_b32 v{Dr+m}, v{Dr+m}, v90, vcc")
        if p == 2:
            a("v_cmp_gt_u32 vcc, 2, v5")
            a("s_and_saveexec_b64 s[74:75], vcc")
        for m in range(4):
            a(f"v_alignbit_b32 v{92+m}, v{Er+m}, v{Dr+m}, 16")
            a(f"v_alignbit_b32 v{96+m}, v{Fr+m}, v{Er+m}, 16")
        off = 2048 * p
        a.lds(f"ds_write_b128 v89, v[{Dr}:{Dr+3}] offset:{off}")
        a.lds(f"ds_write_b128 v89, v[92:95] offset:{off+COPY_STRIDE}")
        a.lds(f"ds_write_b128 v89, v[{Er}:{Er+3}] offset:{off+2*COPY_STRIDE}")
        a.lds(f"ds_write_b128 v89, v[96:99] offset:{off+3*COPY_STRIDE}")
        a("s_nop 1")
        if p == 2:
            a("s_mov_b64 exec, s[74:75]")
    a.wait_all()
    a("s_barrier")
    a("v_lshrrev_b32 v1, 6, v0")
    a("s_nop 0")
    a("v_readfirstlane_b32 s78, v1")
    a("v_and_b32 v2, 15, v0")
    a("v_bfe_u32 v3, v0, 4, 2")
    a("v_add_u32 v5, 1, v2")
    a("v_and_b32 v6, 3, v5")
    a("v_sub_u32 v5, v5, v6")
    a("v_lshl_add_u32 v5, v3, 2, v5")
    a("v_lshlrev_b32 v5, 1, v5")
    a(f"s_movk_i32 s73, {COPY_STRIDE}")
    a("v_mul_lo_u32 v6, v6, s73")
    a("v_add_u32 v5, v5, v6")
    a(f"s_movk_i32 s73, {CH_STRIDE}")
    a("v_mul_lo_u32 v6, v4, s73")
    a("v_add_u32 v5, v5, v6")
    a("v_lshlrev_b32 v7, 5, v2")
    a(f"v_sub_u32 v7, {XB_OFF+480}, v7")
    a("v_lshl_add_u32 v7, v3, 3, v7")
    a("v_add_u32 v7, v7, v6")
    a("s_lshr_b32 s80, s78, 1")
    a("s_mov_b32 s79, s66")
    a("s_cmp_eq_u32 s80, 1")
    a("s_cselect_b32 s79, s67, s79")
    a("s_cmp_eq_u32 s80, 2")
    a("s_cselect_b32 s79, s68, s79")
    a("s_cmp_eq_u32 s80, 3")
    a("s_cselect_b32 s79, s69, s79")
    a("s_and_b32 s81, s78, 1")
    a("s_cmp_eq_u32 s81, 1")
    a("s_cbranch_scc1 L_conv_set1")
    for si, tiles in enumerate(((7, 5, 2, 0), (6, 4, 3, 1))):
        if si == 1:
            a.label("L_conv_set1")
        mx = max(tiles)
        ACC = 8
        FR = 32
        for k in range(16):
            a(f"v_mov_b32 v{ACC+k}, 0")
        def load(w):
            bs = w & 1
            for u in range(mx + 1):
                kb = 8*u + w
                a.lds(f"ds_read_b64 v[{FR+64*bs+4*u}:{FR+64*bs+4*u+1}], v5 offset:{64*kb}", f"w{w}")
                a.lds(f"ds_read_b64 v[{FR+64*bs+4*u+2}:{FR+64*bs+4*u+3}], v5 offset:{64*kb+32}", f"w{w}")
            for e in range(mx + 1):
                off = 2*(256*(7-e) + 32*w)
                a.lds(f"ds_read_b64 v[{FR+64*bs+32+4*e}:{FR+64*bs+32+4*e+1}], v7 offset:{off}", f"w{w}")
                a.lds(f"ds_read_b64 v[{FR+64*bs+32+4*e+2}:{FR+64*bs+32+4*e+3}], v7 offset:{off+32}", f"w{w}")
        load(0)
        for w in range(8):
            a.wait_all(vm=False)
            if w < 7:
                load(w + 1)
            bs = w & 1
            for k, i in enumerate(tiles):
                for u in range(i + 1):
                    e = i - u
                    a(f"v_mfma_f32_16x16x32_bf16 v[{ACC+4*k}:{ACC+4*k+3}], v[{FR+64*bs+4*u}:{FR+64*bs+4*u+3}], v[{FR+64*bs+32+4*e}:{FR+64*bs+32+4*e+3}], v[{ACC+4*k}:{ACC+4*k+3}]")
        a("v_lshlrev_b32 v1, 4, v3")
        a("v_sub_u32 v1, v7, v1")
        for k, i in enumerate(tiles):
            a.lds(f"ds_read_b64 v[{160+2*k}:{161+2*k}], v1 offset:{3608-512*i}")
        a.wait_all(vm=False)
        a("s_nop 7")
        a("s_barrier")
        a("v_lshlrev_b32 v1, 7, v2")
        a("v_lshl_add_u32 v1, v3, 5, v1")
        a("v_lshl_add_u32 v1, v4, 1, v1")
        for k, i in enumerate(tiles):
            ac = ACC + 4*k
            kv = 160 + 2*k
            a(f"v_and_b32 v170, 0xffff0000, v{kv+1}")
            a(f"v_lshlrev_b32 v171, 16, v{kv+1}")
            a(f"v_and_b32 v172, 0xffff0000, v{kv}")
            a(f"v_lshlrev_b32 v173, 16, v{kv}")
            for r in range(4):
                a(f"v_mul_f32 v{170+r}, s79, v{170+r}")
            a("v_cvt_pk_bf16_f32 v174, v170, v171")
            a("v_cvt_pk_bf16_f32 v175, v172, v173")
            a(f"v_cvt_pk_bf16_f32 v176, v{ac}, v{ac+1}")
            a(f"v_cvt_pk_bf16_f32 v177, v{ac+2}, v{ac+3}")
            for hh in range(2):
                a(f"v_lshlrev_b32 v170, 16, v{174+hh}")
                a(f"v_and_b32 v171, 0xffff0000, v{174+hh}")
                a(f"v_lshlrev_b32 v172, 16, v{176+hh}")
                a(f"v_and_b32 v173, 0xffff0000, v{176+hh}")
                a("v_add_f32 v170, v170, v172")
                a("v_add_f32 v171, v171, v173")
                a(f"v_cvt_pk_bf16_f32 v{178+hh}, v170, v171")
            base = 2048 * i
            a.lds(f"ds_write_b16 v1, v178 offset:{base}")
            a.lds(f"ds_write_b16_d16_hi v1, v178 offset:{base+8}")
            a.lds(f"ds_write_b16 v1, v179 offset:{base+16}")
            a.lds(f"ds_write_b16_d16_hi v1, v179 offset:{base+24}")
        a.wait_all(vm=False)
        if si == 0:
            a("s_branch L_conv_join")
    a.label("L_conv_join")
    a("s_barrier")
    a("v_lshlrev_b32 v1, 5, v0")
    a.lds("ds_read_b128 v[8:11], v1")
    a.lds("ds_read_b128 v[12:15], v1 offset:16")
    a("s_movk_i32 s73, 4608")
    a("v_mul_lo_u32 v2, v0, s73")
    a("v_add_u32 v2, s36, v2")
    a.wait_all(vm=False)
    for r in range(4):
        a.vmem(f"buffer_store_dwordx2 v[{8+2*r}:{9+2*r}], v2, s[32:35], 0 offen offset:{1152*r}")
    a("s_endpgm")

def gen_prep():
    a = Asm()
    a.raw(kernel_header("prep_kernel"))
    a(f"s_cmp_ge_u32 s2, {N_CONV_WG+N_LN_WG}")
    a("s_cbranch_scc1 L_prep_exit")
    a("s_load_dwordx4 s[4:7], s[0:1], 0")
    a("s_load_dwordx4 s[8:11], s[0:1], 16")
    a("s_load_dwordx4 s[12:15], s[0:1], 32")
    a("s_load_dwordx2 s[16:17], s[0:1], 96")
    a("s_waitcnt lgkmcnt(0)")
    a(f"s_cmp_ge_u32 s2, {N_CONV_WG}")
    a("s_cbranch_scc1 L_prep_ln")
    gen_conv(a)
    a.label("L_prep_ln")
    a.vm = []; a.lg = []
    gen_ln(a)
    a.label("L_prep_exit")
    a("s_endpgm")
    return a.text(), kernel_desc("prep_kernel", 184, 96, 184), f"; @launch kernel=prep_kernel grid=({N_CONV_WG+N_LN_WG},1,1) block=(512,1,1) lds={PREP_LDS}"
```

```python
import sys
from asmlib import *
import gen_prep, gen_gemm, gen_final
def build(parts, path):
    ref = open("parallel_sum__ssm_conv_h3__glu_gated_bilinear__prompt.s.ref").read()
    head = [l for l in ref.splitlines() if l.startswith(";") and "@launch" not in l]
    out = "\n".join(head) + "\n"
    for (_, _, launch) in parts:
        out += launch + "\n"
    out += '.amdgcn_target "amdgcn-amd-amdhsa--gfx950"\n.text\n'
    for (body, _, _) in parts:
        out += body
    out += '.section .rodata,"a"\n'
    for (_, desc, _) in parts:
        out += ".p2align 6\n" + desc
    open(path, "w").write(out)
if __name__ == "__main__":
    parts = [gen_prep.gen_prep(), gen_gemm.gen_gemm(1), gen_gemm.gen_gemm(2), gen_final.gen_final()]
    build(parts, "k_all.s")
```

```python
class Asm:
    def __init__(self):
        self.lines = []
        self.vm = []
        self.lg = []
    def __call__(self, s):
        import re
        m = re.search(r"offset:(\d+)", s)
        if m:
            n = int(m.group(1))
            if s.startswith("buffer_"):
                assert n < 4096, s
            if s.startswith("ds_"):
                assert n < 65536, s
        self.lines.append("    " + s)
    def label(self, s):
        self.lines.append(s + ":")
    def comment(self, s):
        self.lines.append("    ; " + s)
    def raw(self, s):
        self.lines.append(s)
    def vmem(self, s, tag=None):
        self(s); self.vm.append(tag)
    def lds(self, s, tag=None):
        self(s); self.lg.append(tag)
    def wait_vm(self, tag):
        idx = [i for i, t in enumerate(self.vm) if t == tag]
        if not idx:
            return
        last = idx[-1]
        n = len(self.vm) - 1 - last
        n = min(n, 63)
        self(f"s_waitcnt vmcnt({n})")
        self.vm = self.vm[len(self.vm) - n:] if n > 0 else []
    def wait_lg(self, tag):
        idx = [i for i, t in enumerate(self.lg) if t == tag]
        if not idx:
            return
        last = idx[-1]
        n = len(self.lg) - 1 - last
        n = min(n, 15)
        self(f"s_waitcnt lgkmcnt({n})")
        self.lg = self.lg[len(self.lg) - n:] if n > 0 else []
    def wait_all(self, vm=True, lg=True):
        if vm and lg:
            self("s_waitcnt vmcnt(0) lgkmcnt(0)")
            self.vm = []; self.lg = []
        elif vm:
            self("s_waitcnt vmcnt(0)"); self.vm = []
        elif lg:
            self("s_waitcnt lgkmcnt(0)"); self.lg = []
    def text(self):
        return "\n".join(self.lines) + "\n"

def vr(a, n=1):
    return f"v{a}" if n == 1 else f"v[{a}:{a+n-1}]"
def ar(a, n=1):
    return f"a{a}" if n == 1 else f"a[{a}:{a+n-1}]"
def sr(a, n=1):
    return f"s{a}" if n == 1 else f"s[{a}:{a+n-1}]"

def kernel_header(name):
    return f""".globl {name}
.p2align 8
.type {name},@function
{name}:
"""

def kernel_desc(name, vgpr, sgpr, accum):
    return f""".amdhsa_kernel {name}
  .amdhsa_next_free_vgpr {vgpr}
  .amdhsa_next_free_sgpr {sgpr}
  .amdhsa_accum_offset {accum}
  .amdhsa_group_segment_fixed_size 0
  .amdhsa_kernarg_size 104
  .amdhsa_user_sgpr_count 2
  .amdhsa_user_sgpr_kernarg_segment_ptr 1
  .amdhsa_system_sgpr_workgroup_id_x 1
.end_amdhsa_kernel
"""

KA_Q, KA_K, KA_V, KA_SHIFT, KA_SSMK, KA_SSMD, KA_BX, KA_WG, KA_WU, KA_WD, KA_OUT, KA_DBG, KA_WS = [8*i for i in range(13)]

S, D, F = 2048, 576, 4608
NB_ACT = S * D * 2
NB_W = D * F * 2
WS_XNF = 0
WS_XNR = NB_ACT
WS_Y2 = 2 * NB_ACT
WS_H = 3 * NB_ACT
NB_H = S * F * 2
WS_P = WS_H + NB_H
NB_P = 4 * S * D * 4

def make_srd(a, d, base_lo, nbytes, add=0, tmp=None):
    if add:
        a(f"s_add_u32 s{d}, s{base_lo}, {add}")
        a(f"s_addc_u32 s{d+1}, s{base_lo+1}, 0")
    else:
        a(f"s_mov_b32 s{d}, s{base_lo}")
        a(f"s_mov_b32 s{d+1}, s{base_lo+1}")
    a(f"s_mov_b32 s{d+2}, {nbytes}")
    a(f"s_mov_b32 s{d+3}, 0x00020000")

HP_STRIDE = 4160
XR_STRIDE = 4608
WS_HP = WS_P + NB_P
NB_HP = D * HP_STRIDE
WS_XR = WS_HP + ((NB_HP + 4095) // 4096) * 4096
NB_XR = D * XR_STRIDE
WS_Y2T = WS_Y2
```

```python
from asmlib import *

def gen_final():
    name = "final_kernel"
    a = Asm()
    a.raw(kernel_header(name))
    NWG = 1152
    a(f"s_cmp_ge_u32 s2, {NWG}")
    a(f"s_cbranch_scc1 L_{name}_exit")
    a("s_load_dwordx2 s[4:5], s[0:1], 0")
    a("s_load_dwordx2 s[6:7], s[0:1], 80")
    a("s_load_dwordx2 s[10:11], s[0:1], 96")
    a("v_lshrrev_b32 v1, 6, v0")
    a("v_and_b32 v2, 63, v0")
    a("v_readfirstlane_b32 s12, v1")
    a("s_lshl_b32 s13, s2, 2")
    a("s_nop 1")
    a("s_add_u32 s13, s13, s12")
    a("s_mov_b32 s14, 0x71c71c8")
    a("s_mul_hi_u32 s15, s13, s14")
    a("s_mul_i32 s16, s15, 36")
    a("s_sub_u32 s16, s13, s16")
    a("s_waitcnt lgkmcnt(0)")
    make_srd(a, 20, 4, NB_ACT)
    make_srd(a, 24, 6, NB_ACT)
    make_srd(a, 28, 10, NB_ACT, add=WS_XNR)
    make_srd(a, 32, 10, NB_ACT, add=WS_Y2)
    make_srd(a, 36, 10, NB_P, add=WS_P)
    a("s_lshl_b32 s17, s13, 10")
    a("v_lshlrev_b32 v3, 4, v2")
    a("v_add_u32 v3, s17, v3")
    for sp in range(4):
        a(f"s_mov_b32 s18, {sp*4718592}")
        a.vmem(f"buffer_load_dwordx4 v[{8+4*sp}:{11+4*sp}], v3, s[36:39], s18 offen")
    a("v_and_b32 v4, 15, v2")
    a("s_lshl_b32 s17, s15, 4")
    a("v_add_u32 v4, s17, v4")
    a("s_movk_i32 s18, 1152")
    a("v_mul_lo_u32 v4, v4, s18")
    a("v_lshrrev_b32 v5, 4, v2")
    a("v_lshl_add_u32 v4, v5, 3, v4")
    a("s_lshl_b32 s17, s16, 5")
    a("v_add_u32 v4, s17, v4")
    a.vmem("buffer_load_dwordx2 v[24:25], v4, s[20:23], 0 offen")
    a.vmem("buffer_load_dwordx2 v[26:27], v4, s[28:31], 0 offen")
    a("s_lshl_b32 s17, s16, 16")
    a("s_lshl_b32 s18, s15, 5")
    a("s_add_u32 s17, s17, s18")
    a("v_lshlrev_b32 v5, 14, v5")
    a("v_and_b32 v6, 15, v2")
    a("v_lshl_add_u32 v5, v6, 1, v5")
    a("v_add_u32 v5, s17, v5")
    for r in range(4):
        a(f"v_mov_b32 v{40+r}, 0")
    a("s_movk_i32 s17, 4096")
    a("s_movk_i32 s18, 8192")
    a("s_movk_i32 s19, 12288")
    for r, so in enumerate(("0", "s17", "s18", "s19")):
        a.vmem(f"buffer_load_short_d16_hi v{40+r}, v5, s[32:35], {so} offen")
    a.wait_all()
    for r in range(4):
        a(f"v_add_f32 v{8+r}, v{8+r}, v{12+r}")
        a(f"v_add_f32 v{16+r}, v{16+r}, v{20+r}")
        a(f"v_add_f32 v{8+r}, v{8+r}, v{16+r}")
    a("v_cvt_pk_bf16_f32 v12, v8, v9")
    a("v_cvt_pk_bf16_f32 v13, v10, v11")
    for hh in range(2):
        a(f"v_lshlrev_b32 v30, 16, v{26+hh}")
        a(f"v_and_b32 v31, 0xffff0000, v{26+hh}")
        a(f"v_mul_f32 v30, v30, v{40+2*hh}")
        a(f"v_mul_f32 v31, v31, v{41+2*hh}")
        a("v_cvt_pk_bf16_f32 v34, v30, v31")
        a("v_lshlrev_b32 v30, 16, v34")
        a("v_and_b32 v31, 0xffff0000, v34")
        a(f"v_lshlrev_b32 v32, 16, v{24+hh}")
        a(f"v_and_b32 v33, 0xffff0000, v{24+hh}")
        a("v_add_f32 v30, v30, v32")
        a("v_add_f32 v31, v31, v33")
        a("v_cvt_pk_bf16_f32 v34, v30, v31")
        a("v_lshlrev_b32 v30, 16, v34")
        a("v_and_b32 v31, 0xffff0000, v34")
        a(f"v_lshlrev_b32 v32, 16, v{12+hh}")
        a(f"v_and_b32 v33, 0xffff0000, v{12+hh}")
        a("v_add_f32 v30, v30, v32")
        a("v_add_f32 v31, v31, v33")
        a(f"v_cvt_pk_bf16_f32 v{36+hh}, v30, v31")
    a.vmem("buffer_store_dwordx2 v[36:37], v4, s[24:27], 0 offen")
    a.label(f"L_{name}_exit")
    a("s_endpgm")
    return a.text(), kernel_desc(name, 44, 48, 44), f"; @launch kernel={name} grid=({NWG},1,1) block=(256,1,1) lds=0"
```

```python
from asmlib import *

STAGE = 36864
RING = 4
NST = 9
GEMM_LDS = STAGE * RING

def gen_gemm(which, abl=()):
    g1 = (which == 1)
    name = "gemm1_kernel" if g1 else "gemm2_kernel"
    RT = 4 if g1 else 2
    NM = 2 if g1 else 1
    KS = 2 if g1 else 4
    CT = 9
    PA = 3 if g1 else 7
    PB = 2 if g1 else 6
    NSTEP = NST * KS
    a = Asm()
    a.raw(kernel_header(name))
    a("s_cmp_ge_u32 s2, 256")
    a(f"s_cbranch_scc1 L_{name}_exit")
    if "T" in abl:
        a("s_memtime s[50:51]")
        a("s_memrealtime s[60:61]")
    a("s_load_dwordx4 s[4:7], s[0:1], 56")
    a("s_load_dwordx2 s[8:9], s[0:1], 72")
    a("s_load_dwordx2 s[10:11], s[0:1], 96")
    a("s_and_b32 s12, s2, 7")
    a("s_lshr_b32 s13, s2, 3")
    if g1:
        a("s_and_b32 s14, s13, 3")
        a("s_lshl_b32 s15, s12, 2")
        a("s_add_u32 s14, s14, s15")
        a("s_lshr_b32 s15, s13, 2")
    else:
        a("s_and_b32 s14, s13, 3")
        a("s_and_b32 s15, s12, 1")
        a("s_lshl_b32 s15, s15, 3")
        a("s_lshr_b32 s16, s13, 2")
        a("s_add_u32 s15, s15, s16")
        a("s_lshr_b32 s16, s12, 1")
    a("v_lshrrev_b32 v1, 6, v0")
    a("v_and_b32 v2, 63, v0")
    a("v_readfirstlane_b32 s17, v1")
    a("s_waitcnt lgkmcnt(0)")
    if g1:
        a("s_cmp_ge_u32 s17, 2")
        a("s_cselect_b32 s20, s6, s4")
        a("s_cselect_b32 s21, s7, s5")
        a(f"s_mov_b32 s22, {NB_W}")
        a("s_mov_b32 s23, 0x00020000")
        make_srd(a, 24, 10, NB_ACT, add=WS_XNF)
        make_srd(a, 28, 10, NB_H, add=WS_H)
    else:
        make_srd(a, 20, 8, NB_W)
        make_srd(a, 24, 10, NB_H, add=WS_H)
        make_srd(a, 28, 10, NB_P, add=WS_P)
    VD = 8
    rowbytes = 9216 if g1 else 1152
    a("s_mul_i32 s18, s14, 288")
    if not g1:
        a("s_mul_i32 s19, s16, %d" % (1152 * 1152))
        a("s_add_u32 s18, s18, s19")
    if g1:
        a("s_and_b32 s19, s17, 1")
    else:
        a("s_mov_b32 s19, s17")
    a("s_mul_i32 s19, s19, 576")
    a("s_movk_i32 s32, 3641")
    a("s_movk_i32 s33, 18")
    a(f"s_mov_b32 s34, {rowbytes}")
    for j in range(9):
        a(f"v_add_u32 v3, s19, v2")
        if j:
            a(f"v_add_u32 v3, {64*j}, v3")
        a("v_mul_lo_u32 v4, v3, s32")
        a("v_lshrrev_b32 v4, 16, v4")
        a("v_mul_lo_u32 v5, v4, s33")
        a("v_sub_u32 v5, v3, v5")
        if g1:
            a("v_and_b32 v6, 0xe3, v4")
            a("v_bfe_u32 v7, v4, 2, 2")
            a("v_lshl_add_u32 v6, v7, 3, v6")
            a("v_bfe_u32 v7, v4, 4, 1")
            a("v_lshl_add_u32 v4, v7, 2, v6")
        a("v_mul_lo_u32 v4, v4, s34")
        a("v_lshl_add_u32 v4, v5, 4, v4")
        a(f"v_add_u32 v{VD+j}, s18, v4")
    a("s_mul_i32 s35, s17, 9216")
    VA = 17
    if g1:
        a("s_lshl_b32 s36, s15, 4")
        a("s_lshl_b32 s37, s17, 2")
        a("s_add_u32 s36, s36, s37")
        a("s_mul_i32 s36, s36, 18432")
        astride = 18432
    else:
        a("s_lshl_b32 s36, s15, 3")
        a("s_lshl_b32 s37, s17, 1")
        a("s_add_u32 s36, s36, s37")
        a("s_mul_i32 s36, s36, 147456")
        a("s_mul_i32 s37, s16, 36864")
        a("s_add_u32 s36, s36, s37")
        astride = 147456
    a("v_lshlrev_b32 v3, 4, v2")
    a(f"v_add_u32 v{VA}, s36, v3")
    for rt in range(1, RT):
        a(f"v_add_u32 v{VA+rt}, {astride*rt}, v{VA}")
    VB = 21
    a("v_lshrrev_b32 v3, 4, v2")
    a("v_bfe_u32 v4, v2, 2, 2")
    a("v_lshl_add_u32 v3, v3, 2, v4")
    a("s_movk_i32 s37, 288")
    a("v_mul_lo_u32 v3, v3, s37")
    a("v_and_b32 v4, 3, v2")
    a(f"v_lshl_add_u32 v{VB}, v4, 3, v3")
    for s in range(1, RING):
        a(f"v_add_u32 v{VB+s}, {STAGE*s}, v{VB}")
    AF = 28
    NAF = (PA + 1) * RT * 4
    BF = AF + NAF
    NBF = (PB + 1) * NM * 4
    VACC = BF + NBF
    ntile = RT * CT * NM
    def acc(rt, ct, m):
        idx = (ct * NM + m) * RT + rt
        if idx < 64:
            return ("a", 4 * idx)
        return ("v", VACC + 4 * (idx - 64))
    def accs(rt, ct, m):
        k, b = acc(rt, ct, m)
        return f"{k}[{b}:{b+3}]"
    nvacc = max(0, ntile - 64) * 4
    VT = VACC + nvacc
    stage_stride = (64 * 9216) if g1 else (128 * 1152)

    def dma_issue(st, j):
        slot = st % RING
        a(f"s_add_u32 m0, s35, {slot*STAGE + j*1024}")
        return f"buffer_load_dwordx4 v{VD+j}, s[20:23], s38 offen lds"
    def a_load(step, rt):
        b = AF + (step % (PA + 1)) * RT * 4 + rt * 4
        return f"buffer_load_dwordx4 v[{b}:{b+3}], v{VA+rt}, s[24:27], s39 offen"
    for st in range(3):
        a(f"s_mov_b32 s38, {st*stage_stride}")
        for j in range(9):
            ins = dma_issue(st, j)
            a("s_nop 0")
            a.vmem(ins, f"D{st}")
        if st == 0:
            for t in range(PA):
                a(f"s_movk_i32 s39, {t*1024}")
                for rt in range(RT):
                    a.vmem(a_load(t, rt), f"A{t}")
    NG = NSTEP * CT
    def b_reads(G):
        step, ct = divmod(G, CT)
        st, ks = divmod(step, KS)
        slot = st % RING
        buf = BF + (G % (PB + 1)) * NM * 4
        out = []
        for m in range(NM):
            for half in range(2):
                off = m * 18432 + ks * 9216 + half * 4608 + ct * 32
                out.append(f"ds_read_b64_tr_b16 v[{buf+4*m+2*half}:{buf+4*m+2*half+1}], v{VB+slot} offset:{off}")
        return out
    a.wait_vm("D0")
    a("s_barrier")
    if "T" in abl:
        a("s_memtime s[52:53]")
        a("s_waitcnt lgkmcnt(0)")
    for G in range(PB):
        for ins in b_reads(G):
            a.lds(ins, f"B{G}")
    pend_dma = []
    GPS = KS * CT
    BAR_AHEAD = PB + 1
    for G in range(NG):
        step, ct = divmod(G, CT)
        st = step // KS
        fill = []
        if ct == 0:
            a.wait_vm(f"A{step}")
            if step + PA < NSTEP:
                fill.append(("s", f"s_movk_i32 s39, {(step+PA)*1024}") if (step+PA)*1024 < 32768 else ("s", f"s_mov_b32 s39, {(step+PA)*1024}"))
                for rt in range(RT):
                    fill.append(("v", a_load(step + PA, rt), f"A{step+PA}"))
        nxt = st + 1
        if nxt < NST and G == nxt * GPS - BAR_AHEAD:
            a.wait_vm(f"D{nxt}")
            a("s_barrier")
            if st + 3 < NST:
                pend_dma = [(st + 3, j) for j in range(9)]
                fill.append(("s", f"s_mov_b32 s38, {(st+3)*stage_stride}"))
        if G + PB < NG:
            for ins in b_reads(G + PB):
                fill.append(("l", ins, f"B{G+PB}"))
        if pend_dma:
            for _ in range(1 if g1 else 1):
                if pend_dma:
                    s_, j_ = pend_dma.pop(0)
                    fill.append(("d", s_, j_))
        a.wait_lg(f"B{G}")
        buf = BF + (G % (PB + 1)) * NM * 4
        abuf = AF + (step % (PA + 1)) * RT * 4
        mf = []
        for m in range(NM):
            for rt in range(RT):
                c = accs(rt, ct, m) if step > 0 else "0"
                mf.append(f"v_mfma_f32_16x16x32_bf16 {accs(rt,ct,m)}, v[{buf+4*m}:{buf+4*m+3}], v[{abuf+4*rt}:{abuf+4*rt+3}], {c}")
        per = -(-len(fill) // len(mf)) if fill else 0
        fi = 0
        for ins in mf:
            a(ins)
            for _ in range(per):
                if fi >= len(fill):
                    break
                f = fill[fi]; fi += 1
                if f[0] == "s":
                    a(f[1])
                elif f[0] == "v":
                    if "A" not in abl: a.vmem(f[1], f[2])
                elif f[0] == "l":
                    if "L" not in abl: a.lds(f[1], f[2])
                elif f[0] == "d":
                    if "D" not in abl:
                        ins2 = dma_issue(f[1], f[2])
                        a("s_nop 0")
                        a.vmem(ins2, f"D{f[1]}")
    if "T" in abl:
        a("s_memtime s[54:55]")
        a("s_waitcnt lgkmcnt(0)")
    a("s_nop 7")
    a("s_nop 7")
    def stamp_end():
        if "T" not in abl: return
        a("s_memtime s[56:57]")
        a("s_waitcnt vmcnt(0) lgkmcnt(0)")
        a("s_memtime s[58:59]")
        a("s_memrealtime s[62:63]")
        a("s_waitcnt lgkmcnt(0)")
        a("s_sub_u32 s52, s52, s50")
        a("s_sub_u32 s54, s54, s50")
        a("s_sub_u32 s56, s56, s50")
        a("s_sub_u32 s58, s58, s50")
        a("s_sub_u32 s62, s62, s60")
        make_srd(a, 64, 10, 1<<20, add=(48<<20) + (which<<20))
        a("v_mov_b32 v4, s52")
        a("v_mov_b32 v5, s54")
        a("v_mov_b32 v6, s56")
        a("v_mov_b32 v7, s58")
        a("v_mov_b32 v8, s62")
        a("v_mov_b32 v9, s50")
        a("v_mov_b32 v10, s60")
        a("v_mov_b32 v11, 0")
        a("s_lshl_b32 s70, s2, 2")
        a("s_add_u32 s70, s70, s17")
        a("s_lshl_b32 s70, s70, 5")
        a("v_mov_b32 v3, s70")
        a("buffer_store_dwordx4 v[4:7], v3, s[64:67], 0 offen")
        a("buffer_store_dwordx4 v[8:11], v3, s[64:67], 0 offen offset:16")
    def rd(dst, rt, ct, m):
        k, b = acc(rt, ct, m)
        for r in range(4):
            if k == "a":
                a(f"v_accvgpr_read_b32 v{dst+r}, a{b+r}")
            else:
                a(f"v_mov_b32 v{dst+r}, v{b+r}")
    if g1:
        a("s_lshl_b32 s36, s15, 4")
        a("s_lshl_b32 s37, s17, 2")
        a("s_add_u32 s36, s36, s37")
        a("s_mul_i32 s36, s36, 147456")
        a("s_mul_i32 s37, s14, 9")
        a("s_lshr_b32 s40, s37, 1")
        a("s_lshl_b32 s40, s40, 10")
        a("s_add_u32 s36, s36, s40")
        a("v_lshlrev_b32 v3, 4, v2")
        a("v_add_u32 v3, s36, v3")
        a("s_and_b32 s37, s37, 1")
        a("s_cmp_eq_u32 s37, 1")
        a(f"s_cbranch_scc1 L_{name}_odd")
        for par in range(2):
            if par == 1:
                a.label(f"L_{name}_odd")
            for rt in range(RT):
                for ct in range(CT):
                    T = par + ct
                    half = T & 1
                    o = VT + 16 + 2 * half
                    rd(VT, rt, ct, 0)
                    rd(VT + 4, rt, ct, 1)
                    a(f"v_cvt_pk_bf16_f32 v{VT+8}, v{VT}, v{VT+1}")
                    a(f"v_cvt_pk_bf16_f32 v{VT+9}, v{VT+2}, v{VT+3}")
                    a(f"v_cvt_pk_bf16_f32 v{VT+10}, v{VT+4}, v{VT+5}")
                    a(f"v_cvt_pk_bf16_f32 v{VT+11}, v{VT+6}, v{VT+7}")
                    for hh in range(2):
                        a(f"v_lshlrev_b32 v{VT}, 16, v{VT+8+hh}")
                        a(f"v_and_b32 v{VT+1}, 0xffff0000, v{VT+8+hh}")
                        a(f"v_lshlrev_b32 v{VT+2}, 16, v{VT+10+hh}")
                        a(f"v_and_b32 v{VT+3}, 0xffff0000, v{VT+10+hh}")
                        a(f"v_mul_f32 v{VT}, v{VT}, v{VT+2}")
                        a(f"v_mul_f32 v{VT+1}, v{VT+1}, v{VT+3}")
                        a(f"v_cvt_pk_bf16_f32 v{o+hh}, v{VT}, v{VT+1}")
                    kb = T >> 1
                    a(f"s_mov_b32 s41, {rt*147456 + kb*1024}")
                    if half == 1 and ct > 0:
                        a.vmem(f"buffer_store_dwordx4 v[{VT+16}:{VT+19}], v3, s[28:31], s41 offen")
                        a("s_nop 1")
                    elif half == 1 and ct == 0:
                        a.vmem(f"buffer_store_dwordx2 v[{VT+18}:{VT+19}], v3, s[28:31], s41 offen offset:8")
                        a("s_nop 1")
                    elif half == 0 and ct == CT - 1:
                        a.vmem(f"buffer_store_dwordx2 v[{VT+16}:{VT+17}], v3, s[28:31], s41 offen")
                        a("s_nop 1")
            stamp_end()
            a("s_endpgm")
    else:
        a("s_lshl_b32 s36, s16, 7")
        a("s_lshl_b32 s37, s15, 3")
        a("s_add_u32 s36, s36, s37")
        a("s_lshl_b32 s37, s17, 1")
        a("s_add_u32 s36, s36, s37")
        a("s_mul_i32 s36, s36, 36864")
        a("s_mul_i32 s37, s14, 9216")
        a("s_add_u32 s36, s36, s37")
        a("v_lshlrev_b32 v3, 4, v2")
        a("v_add_u32 v3, s36, v3")
        for rt in range(RT):
            for ct in range(CT):
                k, b = acc(rt, ct, 0)
                off = rt * 36864 + ct * 1024
                a(f"s_mov_b32 s41, {off}")
                a.vmem(f"buffer_store_dwordx4 {k}[{b}:{b+3}], v3, s[28:31], s41 offen")
        stamp_end()
        a("s_endpgm")
    a.label(f"L_{name}_exit")
    a("s_endpgm")
    nv = VT + 24
    nv = (nv + 3) // 4 * 4
    nacc = min(ntile, 64) * 4
    return a.text(), kernel_desc(name, nv + nacc, 96, nv), f"; @launch kernel={name} grid=(256,1,1) block=(256,1,1) lds={GEMM_LDS}"
```

```python
from asmlib import *

STAGE = 36864
RING = 4
NST = 9
GEMM_LDS = STAGE * RING

CV_BASE = 3 * STAGE
CV_STRIDE = 12928
def conv_dma(a):
    a("s_lshl_b32 s42, s2, 2")
    a("s_add_u32 s42, s42, s17")
    a("s_lshl_b32 s43, s42, 12")
    a("s_add_u32 s64, s44, s43")
    a("s_addc_u32 s65, s45, 0")
    a("s_movk_i32 s66, 4096")
    a("s_mov_b32 s67, 0x00020000")
    a(f"s_mul_i32 s43, s42, {XR_STRIDE}")
    a(f"s_add_u32 s43, s43, {WS_XR}")
    a("s_add_u32 s68, s10, s43")
    a("s_addc_u32 s69, s11, 0")
    a(f"s_movk_i32 s70, {XR_STRIDE}")
    a("s_mov_b32 s71, 0x00020000")
    a(f"s_mul_i32 s72, s17, {CV_STRIDE}")
    a(f"s_add_u32 s72, s72, {CV_BASE}")
    a("v_lshlrev_b32 v240, 4, v2")
    a("v_subrev_u32 v241, 32, v240")
    a("v_subrev_u32 v242, 30, v240")
    for cp in range(2):
        for j in range(5):
            if j == 4:
                a("s_mov_b64 exec, 15")
            a(f"s_add_u32 m0, s72, {cp*4160 + j*1024}")
            if j == 0:
                a("s_nop 0")
                a.vmem(f"buffer_load_dwordx4 v{241+cp}, s[64:67], 0 offen lds", "CV")
            else:
                a(f"s_movk_i32 s43, {j*1024 - 32 + 2*cp}")
                a.vmem(f"buffer_load_dwordx4 v240, s[64:67], s43 offen lds", "CV")
            if j == 4:
                a("s_mov_b64 exec, -1")
    for j in range(5):
        if j == 4:
            a("s_mov_b64 exec, 0xffffffff")
        a(f"s_add_u32 m0, s72, {8320 + j*1024}")
        a(f"s_movk_i32 s43, {j*1024}")
        a.vmem(f"buffer_load_dwordx4 v240, s[68:71], s43 offen lds", "CV")
        if j == 4:
            a("s_mov_b64 exec, -1")
    a("v_mov_b32 v243, 0")
    a.vmem("buffer_load_short_d16 v243, off, s[64:67], 0", "CV")
    a("s_lshr_b32 s43, s42, 1")
    a("s_lshl_b32 s43, s43, 2")
    a("s_load_dword s73, s[46:47], s43")

def conv_compute(a, T=False, fillers=None):
    def st(k):
        if T:
            a(f's_memtime s[{80+2*k}:{81+2*k}]')
    st(0)
    make_srd(a, 76, 10, NB_ACT, add=WS_Y2T)
    a("v_and_b32 v244, 15, v2")
    a("v_lshrrev_b32 v245, 4, v2")
    a("v_add_u32 v246, 1, v244")
    a("v_and_b32 v247, 1, v246")
    a("v_sub_u32 v246, v246, v247")
    a("v_lshl_add_u32 v246, v245, 3, v246")
    a("v_lshlrev_b32 v246, 1, v246")
    a("v_mul_u32_u24 v247, 4160, v247")
    a("v_add_u32 v246, v246, v247")
    a("v_add_u32 v246, s72, v246")
    for k in range(1, 4):
        a(f"v_add_u32 v{246+k}, {1024*k}, v246")
    a("v_lshlrev_b32 v250, 5, v244")
    a("v_sub_u32 v250, 8800, v250")
    a("v_lshl_add_u32 v250, v245, 4, v250")
    a("v_add_u32 v250, s72, v250")
    a.wait_vm("CV")
    st(1)
    a("v_mov_b32 v251, s72")
    a("s_mov_b64 exec, 1")
    a.lds("ds_write_b16 v251, v243 offset:4190")
    a("s_mov_b64 exec, -1")
    a.wait_all(vm=False)
    def fr(bs, k, n=4):
        b = (176 if bs == 0 else 128) + k
        return (f"v[{b}:{b+n-1}]" if bs == 0 else f"a[{b}:{b+n-1}]")
    def load(w):
        bs = w & 1
        for u in range(8):
            o = (512 * (u & 1) + 64 * w) // 4
            a.lds(f"ds_read2_b32 {fr(bs, 4*u, 2)}, v{246+(u>>1)} offset0:{o} offset1:{o+1}", f"w{w}")
            a.lds(f"ds_read2_b32 {fr(bs, 4*u+2, 2)}, v{246+(u>>1)} offset0:{o+2} offset1:{o+3}", f"w{w}")
        for e in range(8):
            a.lds(f"ds_read_b128 {fr(bs, 32+4*e)}, v250 offset:{2*(256*(7-e)+32*w)}", f"w{w}")
    load(0)
    for w in range(8):
        a.wait_all(vm=False)
        bs = w & 1
        mf = []
        for u in range(8):
            for i in range(u, 8):
                e = i - u
                c = "0" if (w == 0 and u == 0) else f"a[{80+4*i}:{83+4*i}]"
                mf.append(f"v_mfma_f32_16x16x32_bf16 a[{80+4*i}:{83+4*i}], {fr(bs,4*u)}, {fr(bs,32+4*e)}, {c}")
        if w < 7:
            sub = Asm(); sub.lg = a.lg
            keep = a.lines; a.lines = []
            load(w + 1)
            lds = a.lines; a.lines = keep
        else:
            a("v_mul_u32_u24 v251, 24, v245")
            a("v_sub_u32 v251, v250, v251")
            keep = a.lines; a.lines = []
            for i in range(8):
                a.lds(f"ds_read_b64 v[{176+2*i}:{177+2*i}], v251 offset:{3608-512*i}", "kv")
            lds = a.lines; a.lines = keep
        for k, ins in enumerate(mf):
            a(ins)
            if k < len(lds):
                a.lines.append(lds[k])
            if fillers and k % 3 == 2:
                fillers.pop(0)()
        assert len(lds) <= len(mf)
    a.wait_all(vm=False)
    st(2)
    a("s_and_b32 s43, s42, 1")
    a("s_lshl_b32 s74, s73, 16")
    a("s_and_b32 s73, s73, 0xffff0000")
    a("s_cmp_eq_u32 s43, 1")
    a("s_cselect_b32 s73, s73, s74")
    a("s_lshl_b32 s74, s42, 12")
    a("v_lshlrev_b32 v251, 5, v244")
    a("v_lshl_add_u32 v251, v245, 3, v251")
    a("v_add_u32 v251, s74, v251")
    a("s_nop 4")
    T = 200
    for i in range(8):
        kv = 176 + 2*i
        for r in range(4):
            a(f"v_accvgpr_read_b32 v{T+12+r}, a{80+4*i+r}")
        a(f"v_and_b32 v{T}, 0xffff0000, v{kv+1}")
        a(f"v_lshlrev_b32 v{T+1}, 16, v{kv+1}")
        a(f"v_and_b32 v{T+2}, 0xffff0000, v{kv}")
        a(f"v_lshlrev_b32 v{T+3}, 16, v{kv}")
        for r in range(4):
            a(f"v_mul_f32 v{T+r}, s73, v{T+r}")
        a(f"v_cvt_pk_bf16_f32 v{T+4}, v{T}, v{T+1}")
        a(f"v_cvt_pk_bf16_f32 v{T+5}, v{T+2}, v{T+3}")
        a(f"v_cvt_pk_bf16_f32 v{T+6}, v{T+12}, v{T+13}")
        a(f"v_cvt_pk_bf16_f32 v{T+7}, v{T+14}, v{T+15}")
        o = T + 8 + 2 * (i & 1)
        for hh in range(2):
            a(f"v_lshlrev_b32 v{T}, 16, v{T+4+hh}")
            a(f"v_and_b32 v{T+1}, 0xffff0000, v{T+4+hh}")
            a(f"v_lshlrev_b32 v{T+2}, 16, v{T+6+hh}")
            a(f"v_and_b32 v{T+3}, 0xffff0000, v{T+6+hh}")
            a(f"v_add_f32 v{T}, v{T}, v{T+2}")
            a(f"v_add_f32 v{T+1}, v{T+1}, v{T+3}")
            a(f"v_cvt_pk_bf16_f32 v{o+hh}, v{T}, v{T+1}")
        a(f"buffer_store_dwordx2 v[{o}:{o+1}], v251, s[76:79], 0 offen offset:{512*i}")

def gen_gemm(which, abl=(), PA=None, PB=None):
    g1 = (which == 1)
    name = "gemm1_kernel" if g1 else "gemm2_kernel"
    RT = 4 if g1 else 2
    NM = 2 if g1 else 1
    KS = 2 if g1 else 4
    CT = 9
    PA = PA or (3 if g1 else 11)
    PB = PB or (2 if g1 else 6)
    VPG = 3 if g1 else 1
    NSTEP = NST * KS
    FULLPRO = (not g1) or ('F' in abl)
    a = Asm()
    a.raw(kernel_header(name))
    a("s_cmp_ge_u32 s2, 256")
    a(f"s_cbranch_scc1 L_{name}_exit")
    if "T" in abl:
        a("s_memtime s[50:51]")
        a("s_memrealtime s[60:61]")
    a("s_load_dwordx4 s[4:7], s[0:1], 56")
    a("s_load_dwordx2 s[8:9], s[0:1], 72")
    a("s_load_dwordx2 s[10:11], s[0:1], 96")
    if g1:
        a("s_load_dwordx4 s[44:47], s[0:1], 32")
    a("s_and_b32 s12, s2, 7")
    a("s_lshr_b32 s13, s2, 3")
    if g1:
        a("s_and_b32 s14, s13, 3")
        a("s_lshl_b32 s15, s12, 2")
        a("s_add_u32 s14, s14, s15")
        a("s_lshr_b32 s15, s13, 2")
    else:
        a("s_and_b32 s14, s13, 3")
        a("s_and_b32 s15, s12, 1")
        a("s_lshl_b32 s15, s15, 3")
        a("s_lshr_b32 s16, s13, 2")
        a("s_add_u32 s15, s15, s16")
        a("s_lshr_b32 s16, s12, 1")
    a("v_lshrrev_b32 v1, 6, v0")
    a("v_and_b32 v2, 63, v0")
    a("v_readfirstlane_b32 s17, v1")
    VD = 8
    rowbytes = 9216 if g1 else 1152
    a("s_mul_i32 s18, s14, 288")
    if not g1:
        a("s_mul_i32 s19, s16, %d" % (1152 * 1152))
        a("s_add_u32 s18, s18, s19")
    if g1:
        a("s_and_b32 s19, s17, 1")
    else:
        a("s_mov_b32 s19, s17")
    a("s_mul_i32 s19, s19, 576")
    a("s_movk_i32 s32, 3641")
    a("s_movk_i32 s33, 18")
    a(f"s_mov_b32 s34, {rowbytes}")
    for j in range(9):
        a(f"v_add_u32 v3, s19, v2")
        if j:
            a(f"v_add_u32 v3, {64*j}, v3")
        a("v_mul_lo_u32 v4, v3, s32")
        a("v_lshrrev_b32 v4, 16, v4")
        a("v_mul_lo_u32 v5, v4, s33")
        a("v_sub_u32 v5, v3, v5")
        if g1:
            a("v_and_b32 v6, 0xe3, v4")
            a("v_bfe_u32 v7, v4, 2, 2")
            a("v_lshl_add_u32 v6, v7, 3, v6")
            a("v_bfe_u32 v7, v4, 4, 1")
            a("v_lshl_add_u32 v4, v7, 2, v6")
        a("v_mul_lo_u32 v4, v4, s34")
        a("v_lshl_add_u32 v4, v5, 4, v4")
        a(f"v_add_u32 v{VD+j}, s18, v4")
    a("s_mul_i32 s35, s17, 9216")
    VA = 17
    if g1:
        a("s_lshl_b32 s36, s15, 4")
        a("s_lshl_b32 s37, s17, 2")
        a("s_add_u32 s36, s36, s37")
        a("s_mul_i32 s36, s36, 18432")
        astride = 18432
    else:
        a("s_lshl_b32 s36, s15, 3")
        a("s_lshl_b32 s37, s17, 1")
        a("s_add_u32 s36, s36, s37")
        a("s_mul_i32 s36, s36, 147456")
        a("s_mul_i32 s37, s16, 36864")
        a("s_add_u32 s36, s36, s37")
        astride = 147456
    a("v_lshlrev_b32 v3, 4, v2")
    a(f"v_add_u32 v{VA}, s36, v3")
    for rt in range(1, RT):
        a(f"v_add_u32 v{VA+rt}, {astride*rt}, v{VA}")
    VB = 21
    a("v_lshrrev_b32 v3, 4, v2")
    a("v_bfe_u32 v4, v2, 2, 2")
    a("v_lshl_add_u32 v3, v3, 2, v4")
    a("s_movk_i32 s37, 288")
    a("v_mul_lo_u32 v3, v3, s37")
    a("v_and_b32 v4, 3, v2")
    a(f"v_lshl_add_u32 v{VB}, v4, 3, v3")
    for s in range(1, RING):
        a(f"v_add_u32 v{VB+s}, {STAGE*s}, v{VB}")
    a("s_waitcnt lgkmcnt(0)")
    if g1:
        a("s_cmp_ge_u32 s17, 2")
        a("s_cselect_b32 s20, s6, s4")
        a("s_cselect_b32 s21, s7, s5")
        a(f"s_mov_b32 s22, {NB_W}")
        a("s_mov_b32 s23, 0x00020000")
        make_srd(a, 24, 10, NB_ACT, add=WS_XNF)
        make_srd(a, 28, 10, NB_H, add=WS_H)
    else:
        make_srd(a, 20, 8, NB_W)
        make_srd(a, 24, 10, NB_H, add=WS_H)
        make_srd(a, 28, 10, NB_P, add=WS_P)
    if g1:
        make_srd(a, 88, 8, NB_W)
        a("s_lshr_b32 s92, s12, 1")
        a("s_mul_i32 s92, s92, 1327104")
        a("s_mul_i32 s93, s13, 41472")
        a("s_add_u32 s92, s92, s93")
        a("s_mul_i32 s93, s17, 10368")
        a("s_add_u32 s92, s92, s93")
        a("v_lshlrev_b32 v25, 4, v2")
        a("v_add_u32 v25, s92, v25")
    AF = 28
    NAF = (PA + 1) * RT * 4
    BF = AF + NAF
    NBF = (PB + 1) * NM * 4
    VACC = BF + NBF
    ntile = RT * CT * NM
    def acc(rt, ct, m):
        idx = (ct * NM + m) * RT + rt
        if idx < 64:
            return ("a", 4 * idx)
        return ("v", VACC + 4 * (idx - 64))
    def accs(rt, ct, m):
        k, b = acc(rt, ct, m)
        return f"{k}[{b}:{b+3}]"
    nvacc = max(0, ntile - 64) * 4
    VT = VACC + nvacc
    stage_stride = (64 * 9216) if g1 else (128 * 1152)

    def emit_dma(st, j):
        slot = st % RING
        a(f"s_add_u32 m0, s35, {slot*STAGE + j*1024}")
        a(f"s_mov_b32 s38, {st*stage_stride}")
        a.vmem(f"buffer_load_dwordx4 v{VD+j}, s[20:23], s38 offen lds", f"D{st}")
    def emit_aload(step, rt):
        b = AF + (step % (PA + 1)) * RT * 4 + rt * 4
        a(f"s_mov_b32 s39, {step*1024}")
        a.vmem(f"buffer_load_dwordx4 v[{b}:{b+3}], v{VA+rt}, s[24:27], s39 offen", f"A{step}")
    def emit_pf(i, _):
        a(f"s_movk_i32 s93, {i*1024}")
        a.vmem(f"buffer_load_dwordx4 v[{VT+20}:{VT+23}], v25, s[88:91], s93 offen", "PF")
    if g1:
        a("s_cmp_ge_u32 s2, 144")
        a(f"s_cbranch_scc1 L_{name}_nocv1")
        conv_dma(a)
        a.label(f"L_{name}_nocv1")
    for j in range(9):
        emit_dma(0, j)
    for rt in range(RT):
        emit_aload(0, rt)
    queue = []
    def qa(t):
        return [("A", t, rt) for rt in range(RT)]
    def qd(s):
        return [("D", s, j) for j in range(9)]
    na1 = KS
    for t in range(1, min(PA, na1)):
        queue += qa(t)
    queue += qd(1)
    for t in range(max(1, min(PA, na1)), min(PA, 2*KS)):
        queue += qa(t)
    queue += qd(2)
    for t in range(max(1, min(PA, 2*KS)), PA):
        queue += qa(t)
    if (not g1) and FULLPRO:
        for x in queue:
            (emit_aload if x[0] == "A" else emit_dma)(x[1], x[2])
        queue = []
    if g1:
        a("s_cmp_ge_u32 s2, 144")
        a(f"s_cbranch_scc1 L_{name}_nocv2")
        saved = list(a.vm)
        fl = [(lambda x=x: (emit_aload if x[0] == "A" else emit_dma)(x[1], x[2])) for x in queue]
        conv_compute(a, 'T' in abl, fl)
        assert not fl
        a(f"s_branch L_{name}_cvdone")
        a.label(f"L_{name}_nocv2")
        a.vm = [t for t in saved if t != "CV"]
        for x in queue:
            (emit_aload if x[0] == "A" else emit_dma)(x[1], x[2])
        queue = []
        a.label(f"L_{name}_cvdone")
        a.lg = []
    NG = NSTEP * CT
    def b_reads(G):
        step, ct = divmod(G, CT)
        st, ks = divmod(step, KS)
        slot = st % RING
        buf = BF + (G % (PB + 1)) * NM * 4
        out = []
        for m in range(NM):
            for half in range(2):
                off = m * 18432 + ks * 9216 + half * 4608 + ct * 32
                out.append(f"ds_read_b64_tr_b16 v[{buf+4*m+2*half}:{buf+4*m+2*half+1}], v{VB+slot} offset:{off}")
        return out
    a.wait_vm("D0")
    a("s_barrier")
    if "T" in abl:
        a("s_memtime s[52:53]")
        a("s_waitcnt lgkmcnt(0)")
    for G in range(PB):
        for ins in b_reads(G):
            a.lds(ins, f"B{G}")
    GPS = KS * CT
    BAR_AHEAD = PB + 1
    issued = set()
    for G in range(NG):
        step, ct = divmod(G, CT)
        st = step // KS
        fill = []
        if ct == 0:
            while any(x[0] == "A" and x[1] == step for x in queue):
                x = queue.pop(0)
                {"A": emit_aload, "D": emit_dma, "P": emit_pf}[x[0]](x[1], x[2])
            a.wait_vm(f"A{step}")
            if step + PA < NSTEP:
                queue += qa(step + PA)
        nxt = st + 1
        if nxt < NST and G == nxt * GPS - BAR_AHEAD:
            while any(x[0] == "D" and x[1] == nxt for x in queue):
                x = queue.pop(0)
                {"A": emit_aload, "D": emit_dma, "P": emit_pf}[x[0]](x[1], x[2])
            a.wait_vm(f"D{nxt}")
            a("s_barrier")
            if st + 3 < NST:
                queue += qd(st + 3)
            if g1 and st < 6:
                queue += [("P", 2*st, 0), ("P", 2*st+1, 0)][: (2 if st < 5 else 1)]
        if G + PB < NG:
            for ins in b_reads(G + PB):
                fill.append(("l", ins, f"B{G+PB}"))
        for _ in range(VPG):
            if queue:
                fill.append(queue.pop(0))
        a.wait_lg(f"B{G}")
        buf = BF + (G % (PB + 1)) * NM * 4
        abuf = AF + (step % (PA + 1)) * RT * 4
        mf = []
        for m in range(NM):
            for rt in range(RT):
                c = accs(rt, ct, m) if step > 0 else "0"
                mf.append(f"v_mfma_f32_16x16x32_bf16 {accs(rt,ct,m)}, v[{buf+4*m}:{buf+4*m+3}], v[{abuf+4*rt}:{abuf+4*rt+3}], {c}")
        per = -(-len(fill) // len(mf)) if fill else 0
        fi = 0
        for ins in mf:
            a(ins)
            for _ in range(per):
                if fi >= len(fill):
                    break
                f = fill[fi]; fi += 1
                if f[0] == "l":
                    a.lds(f[1], f[2])
                elif f[0] == "A":
                    emit_aload(f[1], f[2])
                elif f[0] == "D":
                    emit_dma(f[1], f[2])
                elif f[0] == "P":
                    emit_pf(f[1], f[2])
    assert not queue
    if "T" in abl:
        a("s_memtime s[54:55]")
        a("s_waitcnt lgkmcnt(0)")
    a("s_nop 7")
    a("s_nop 7")
    def stamp_end():
        if "T" not in abl: return
        a("s_memtime s[56:57]")
        a("s_waitcnt vmcnt(0) lgkmcnt(0)")
        a("s_memtime s[58:59]")
        a("s_memrealtime s[62:63]")
        a("s_waitcnt lgkmcnt(0)")
        for x in (52, 54, 56, 58):
            a(f"s_sub_u32 s{x}, s{x}, s50")
        a("s_sub_u32 s62, s62, s60")
        make_srd(a, 64, 10, 1<<20, add=(56<<20) + (which<<20))
        if g1:
            for x in (80, 82, 84):
                a(f"s_sub_u32 s{x}, s{x}, s50")
        for i, x in enumerate((52, 54, 56, 58, 62, 80, 82, 84)):
            a(f"v_mov_b32 v{4+i}, s{x}")
        a("s_lshl_b32 s70, s2, 2")
        a("s_add_u32 s70, s70, s17")
        a("s_lshl_b32 s70, s70, 5")
        a("v_mov_b32 v3, s70")
        a("buffer_store_dwordx4 v[4:7], v3, s[64:67], 0 offen")
        a("buffer_store_dwordx4 v[8:11], v3, s[64:67], 0 offen offset:16")
    def rd(dst, rt, ct, m):
        k, b = acc(rt, ct, m)
        if k == "a":
            for r in range(4):
                a(f"v_accvgpr_read_b32 v{dst+r}, a{b+r}")
            return dst
        return b
    if g1:
        a("s_lshl_b32 s36, s15, 4")
        a("s_lshl_b32 s37, s17, 2")
        a("s_add_u32 s36, s36, s37")
        a("s_mul_i32 s36, s36, 147456")
        a("s_mul_i32 s37, s14, 9")
        a("s_lshr_b32 s40, s37, 1")
        a("s_lshl_b32 s40, s40, 10")
        a("s_add_u32 s36, s36, s40")
        a("v_lshlrev_b32 v3, 4, v2")
        a("v_add_u32 v3, s36, v3")
        a("s_and_b32 s37, s37, 1")
        a("s_cmp_eq_u32 s37, 1")
        a(f"s_cbranch_scc1 L_{name}_odd")
        for par in range(2):
            if par == 1:
                a.label(f"L_{name}_odd")
            ob = 0
            for rt in range(RT):
                for ct in range(CT):
                    T = par + ct
                    half = T & 1
                    OB = VT + 16 + 4 * ob
                    o = OB + 2 * half
                    g = rd(VT, rt, ct, 0)
                    u = rd(VT + 4, rt, ct, 1)
                    a(f"v_cvt_pk_bf16_f32 v{VT+8}, v{g}, v{g+1}")
                    a(f"v_cvt_pk_bf16_f32 v{VT+9}, v{g+2}, v{g+3}")
                    a(f"v_cvt_pk_bf16_f32 v{VT+10}, v{u}, v{u+1}")
                    a(f"v_cvt_pk_bf16_f32 v{VT+11}, v{u+2}, v{u+3}")
                    for hh in range(2):
                        a(f"v_lshlrev_b32 v{VT}, 16, v{VT+8+hh}")
                        a(f"v_and_b32 v{VT+1}, 0xffff0000, v{VT+8+hh}")
                        a(f"v_lshlrev_b32 v{VT+2}, 16, v{VT+10+hh}")
                        a(f"v_and_b32 v{VT+3}, 0xffff0000, v{VT+10+hh}")
                        a(f"v_pk_mul_f32 v[{VT}:{VT+1}], v[{VT}:{VT+1}], v[{VT+2}:{VT+3}]")
                        a(f"v_cvt_pk_bf16_f32 v{o+hh}, v{VT}, v{VT+1}")
                    kb = T >> 1
                    a(f"s_mov_b32 s41, {rt*147456 + kb*1024}")
                    if half == 1 and ct > 0:
                        a.vmem(f"buffer_store_dwordx4 v[{OB}:{OB+3}], v3, s[28:31], s41 offen")
                        ob ^= 1
                    elif half == 1 and ct == 0:
                        a.vmem(f"buffer_store_dwordx2 v[{OB+2}:{OB+3}], v3, s[28:31], s41 offen offset:8")
                        ob ^= 1
                    elif half == 0 and ct == CT - 1:
                        a.vmem(f"buffer_store_dwordx2 v[{OB}:{OB+1}], v3, s[28:31], s41 offen")
                        ob ^= 1
            stamp_end()
            a("s_endpgm")
    else:
        a("s_lshl_b32 s36, s16, 7")
        a("s_lshl_b32 s37, s15, 3")
        a("s_add_u32 s36, s36, s37")
        a("s_lshl_b32 s37, s17, 1")
        a("s_add_u32 s36, s36, s37")
        a("s_mul_i32 s36, s36, 36864")
        a("s_mul_i32 s37, s14, 9216")
        a("s_add_u32 s36, s36, s37")
        a("v_lshlrev_b32 v3, 4, v2")
        a("v_add_u32 v3, s36, v3")
        for rt in range(RT):
            for ct in range(CT):
                k, b = acc(rt, ct, 0)
                off = rt * 36864 + ct * 1024
                a(f"s_mov_b32 s41, {off}")
                a.vmem(f"buffer_store_dwordx4 {k}[{b}:{b+3}], v3, s[28:31], s41 offen")
        stamp_end()
        a("s_endpgm")
    a.label(f"L_{name}_exit")
    a("s_endpgm")
    nv = VT + 24
    nv = (nv + 3) // 4 * 4
    nacc = min(ntile, 64) * 4
    lds = GEMM_LDS
    if g1:
        assert nv <= 176
        nv, nacc, lds = 256, 256, 163840
    return a.text(), kernel_desc(name, nv + nacc, 96, nv), f"; @launch kernel={name} grid=(256,1,1) block=(256,1,1) lds={lds}"
```

```python
from asmlib import *

N_CONV_WG = 144
N_LN_WG = 32
CH_STRIDE = 21248
COPY_STRIDE = 4160
XB_OFF = 16640
PREP_LDS = 4 * CH_STRIDE

def dpp_sum8(a, v, t):
    a("s_nop 1")
    a(f"v_add_f32_dpp v{t}, v{v}, v{v} quad_perm:[1,0,3,2] row_mask:0xf bank_mask:0xf")
    a("s_nop 1")
    a(f"v_add_f32_dpp v{v}, v{t}, v{t} quad_perm:[2,3,0,1] row_mask:0xf bank_mask:0xf")
    a("s_nop 1")
    a(f"v_add_f32_dpp v{t}, v{v}, v{v} row_half_mirror row_mask:0xf bank_mask:0xf")
    a(f"v_mov_b32 v{v}, v{t}")

def div_by_576(a, v, t0, t1):
    a(f"v_mul_f32 v{t0}, s70, v{v}")
    a(f"v_fma_f32 v{t1}, -v{t0}, s71, v{v}")
    a(f"v_fma_f32 v{v}, v{t1}, s70, v{t0}")

def round_bf16(a, v):
    a(f"v_cvt_pk_bf16_f32 v{v}, v{v}, v{v}")
    a(f"v_lshlrev_b32 v{v}, 16, v{v}")

def gen_ln(a):
    a.comment("---------------- LayerNorm path: 8 rows per wave ----------------")
    make_srd(a, 20, 4, NB_ACT)
    make_srd(a, 24, 16, NB_ACT, add=WS_XNF)
    make_srd(a, 28, 16, NB_ACT, add=WS_XNR)
    a("s_mov_b32 s70, 0x3ae38e39")
    a("s_mov_b32 s71, 0x44100000")
    a("s_mov_b32 s72, 0x3727c5ac")
    a(f"s_sub_u32 s3, s2, {N_CONV_WG}")
    a("s_lshl_b32 s3, s3, 6")
    a("v_lshrrev_b32 v3, 3, v0")
    a("v_add_u32 v3, s3, v3")
    a("v_and_b32 v4, 7, v0")
    a("s_movk_i32 s73, 1152")
    a("v_mul_lo_u32 v5, v3, s73")
    a("v_lshl_add_u32 v5, v4, 4, v5")
    for i in range(9):
        a.vmem(f"buffer_load_dwordx4 v[{8+4*i}:{11+4*i}], v5, s[20:23], 0 offen offset:{128*i}")
    a("v_lshrrev_b32 v6, 4, v3")
    a("s_movk_i32 s73, 18432")
    a("v_mul_lo_u32 v6, v6, s73")
    a("v_lshrrev_b32 v7, 2, v4")
    a("v_lshl_add_u32 v6, v7, 10, v6")
    a("v_and_b32 v7, 3, v4")
    a("v_lshl_add_u32 v6, v7, 8, v6")
    a("v_and_b32 v7, 15, v3")
    a("v_lshl_add_u32 v6, v7, 4, v6")
    a.wait_all()
    X = 44
    for d in range(36):
        a(f"v_lshlrev_b32 v{X+2*d}, 16, v{8+d}")
        a(f"v_and_b32 v{X+2*d+1}, 0xffff0000, v{8+d}")
    for k in range(4):
        a(f"v_add_f32 v{116+k}, v{X+k}, v{X+4+k}")
    for e in range(8, 72):
        a(f"v_add_f32 v{116+(e&3)}, v{116+(e&3)}, v{X+e}")
    a("v_add_f32 v116, v116, v117")
    a("v_add_f32 v118, v118, v119")
    a("v_add_f32 v116, v116, v118")
    dpp_sum8(a, 116, 117)
    div_by_576(a, 116, 117, 118)
    for k in range(4):
        a(f"v_mov_b32 v{120+k}, 0")
    for e in range(72):
        a(f"v_sub_f32 v124, v{X+e}, v116")
        a(f"v_fmac_f32 v{120+(e&3)}, v124, v124")
    a("v_add_f32 v120, v120, v121")
    a("v_add_f32 v122, v122, v123")
    a("v_add_f32 v120, v120, v122")
    dpp_sum8(a, 120, 121)
    div_by_576(a, 120, 121, 122)
    round_bf16(a, 120)
    round_bf16(a, 116)
    a("v_add_f32 v120, s72, v120")
    round_bf16(a, 120)
    a("v_sqrt_f32 v120, v120")
    a("s_nop 0")
    round_bf16(a, 120)
    a("v_rcp_f32 v121, v120")
    a("s_nop 0")
    a("v_fma_f32 v122, -v120, v121, 1.0")
    a("v_fma_f32 v121, v122, v121, v121")
    for d in range(36):
        x0, x1 = X + 2*d, X + 2*d + 1
        a(f"v_sub_f32 v{x0}, v{x0}, v116")
        a(f"v_sub_f32 v{x1}, v{x1}, v116")
        a(f"v_cvt_pk_bf16_f32 v124, v{x0}, v{x1}")
        a(f"v_lshlrev_b32 v{x0}, 16, v124")
        a(f"v_and_b32 v{x1}, 0xffff0000, v124")
        a(f"v_mul_f32 v125, v{x0}, v121")
        a(f"v_mul_f32 v126, v{x1}, v121")
        a(f"v_fma_f32 v{x0}, -v125, v120, v{x0}")
        a(f"v_fma_f32 v{x1}, -v126, v120, v{x1}")
        a(f"v_fma_f32 v125, v{x0}, v121, v125")
        a(f"v_fma_f32 v126, v{x1}, v121, v126")
        a(f"v_cvt_pk_bf16_f32 v{8+d}, v125, v126")
    for i in range(9):
        a.vmem(f"buffer_store_dwordx4 v[{8+4*i}:{11+4*i}], v5, s[28:31], 0 offen offset:{128*i}")
        a(f"s_movk_i32 s73, {2048*i}")
        a.vmem(f"buffer_store_dwordx4 v[{8+4*i}:{11+4*i}], v6, s[24:27], s73 offen")
    a("s_endpgm")

def gen_conv(a, T=False):
    def st(i):
        if T:
            a(f's_memtime s[{84+2*i}:{85+2*i}]')
            a('s_waitcnt lgkmcnt(0)')
            a.lg = []
    st(0)
    make_srd(a, 20, 6, NB_ACT)
    make_srd(a, 24, 8, NB_ACT)
    make_srd(a, 28, 12, NB_ACT)
    make_srd(a, 32, 16, NB_ACT, add=WS_Y2)
    a("s_lshl_b32 s3, s2, 5")
    a("s_add_u32 s10, s10, s3")
    a("s_addc_u32 s11, s11, 0")
    a("s_load_dwordx8 s[40:47], s[10:11], 0")
    a("s_lshl_b32 s3, s2, 3")
    a("s_add_u32 s14, s14, s3")
    a("s_addc_u32 s15, s15, 0")
    a("s_load_dwordx2 s[64:65], s[14:15], 0")
    a("s_lshl_b32 s36, s2, 3")
    a("s_movk_i32 s73, 4608")
    a("v_mul_lo_u32 v1, v0, s73")
    a("v_add_u32 v1, s36, v1")
    a("v_subrev_u32 v2, 3456, v1")
    a("v_cmp_eq_u32 vcc, 0, v0")
    a("v_mov_b32 v3, 0x7fffff00")
    a("s_nop 0")
    a("v_cndmask_b32 v2, v2, v3, vcc")
    for r in range(3):
        a.vmem(f"buffer_load_dwordx2 v[{8+2*r}:{9+2*r}], v2, s[20:23], 0 offen offset:{1152*r}")
    for r in range(3, 7):
        a.vmem(f"buffer_load_dwordx2 v[{8+2*r}:{9+2*r}], v1, s[20:23], 0 offen offset:{1152*(r-3)}")
    for r in range(4):
        a.vmem(f"buffer_load_dwordx2 v[{22+2*r}:{23+2*r}], v1, s[24:27], 0 offen offset:{1152*r}")
    a("v_lshrrev_b32 v4, 7, v0")
    a("v_and_b32 v5, 127, v0")
    a("s_lshl_b32 s37, s2, 14")
    a("v_lshlrev_b32 v6, 12, v4")
    a("v_add_u32 v6, s37, v6")
    a("v_lshlrev_b32 v7, 4, v5")
    a("v_add_u32 v7, v7, v6")
    a("v_subrev_u32 v7, 32, v7")
    a("v_cmp_gt_u32 vcc, 2, v5")
    a("s_nop 1")
    a("v_cndmask_b32 v30, v7, v6, vcc")
    a("v_add_u32 v31, 4, v7")
    a("v_cndmask_b32 v31, v31, v6, vcc")
    a("v_add_u32 v76, 8, v7")
    a("v_cndmask_b32 v76, v76, v6, vcc")
    HC = 128
    a.vmem(f"buffer_load_dwordx4 v[{HC}:{HC+3}], v30, s[28:31], 0 offen", "h0")
    a.vmem(f"buffer_load_dwordx4 v[{HC+4}:{HC+7}], v31, s[28:31], 0 offen", "h0")
    a.vmem(f"buffer_load_dwordx4 v[{HC+8}:{HC+11}], v76, s[28:31], 0 offen", "h0")
    a("s_movk_i32 s73, 4096")
    for p in (1, 2):
        for e in range(3):
            so, io = ("0", 2048) if p == 1 else ("s73", 0)
            a.vmem(f"buffer_load_dwordx4 v[{HC+12*p+4*e}:{HC+12*p+4*e+3}], v7, s[28:31], {so} offen offset:{io+4*e}", f"h{p}")
    a("s_waitcnt lgkmcnt(0)")
    for c in range(4):
        a(f"s_lshl_b32 s{48+4*c}, s{40+2*c}, 16")
        a(f"s_and_b32 s{49+4*c}, s{40+2*c}, 0xffff0000")
        a(f"s_lshl_b32 s{50+4*c}, s{41+2*c}, 16")
        a(f"s_and_b32 s{51+4*c}, s{41+2*c}, 0xffff0000")
    a("s_lshl_b32 s66, s64, 16")
    a("s_and_b32 s67, s64, 0xffff0000")
    a("s_lshl_b32 s68, s65, 16")
    a("s_and_b32 s69, s65, 0xffff0000")
    a("s_waitcnt vmcnt(9)")
    a.vm = a.vm[-9:]
    st(1)
    K = 32
    V = 60
    for r in range(7):
        for hh in range(2):
            a(f"v_lshlrev_b32 v{K+4*r+2*hh}, 16, v{8+2*r+hh}")
            a(f"v_and_b32 v{K+4*r+2*hh+1}, 0xffff0000, v{8+2*r+hh}")
    for r in range(4):
        for hh in range(2):
            a(f"v_lshlrev_b32 v{V+4*r+2*hh}, 16, v{22+2*r+hh}")
            a(f"v_and_b32 v{V+4*r+2*hh+1}, 0xffff0000, v{22+2*r+hh}")
    a("v_lshlrev_b32 v77, 3, v0")
    a(f"v_sub_u32 v77, {XB_OFF+4088}, v77")
    for c in range(4):
        for pr, (ta, tb) in enumerate(((3, 2), (1, 0))):
            A0, A1, T0, T1, PK = 78, 79, 80, 81, 82
            for tau in range(4):
                w = 48 + 4*c + (3 - tau)
                dst0, dst1 = (A0, A1) if tau == 0 else (T0, T1)
                a(f"v_mul_f32 v{dst0}, s{w}, v{K+4*(ta+tau)+c}")
                a(f"v_mul_f32 v{dst1}, s{w}, v{K+4*(tb+tau)+c}")
                a(f"v_cvt_pk_bf16_f32 v{PK}, v{dst0}, v{dst1}")
                a(f"v_lshlrev_b32 v{dst0}, 16, v{PK}")
                a(f"v_and_b32 v{dst1}, 0xffff0000, v{PK}")
                if tau > 0:
                    a(f"v_add_f32 v{A0}, v{A0}, v{T0}")
                    a(f"v_add_f32 v{A1}, v{A1}, v{T1}")
                    a(f"v_cvt_pk_bf16_f32 v{PK}, v{A0}, v{A1}")
                    a(f"v_lshlrev_b32 v{A0}, 16, v{PK}")
                    a(f"v_and_b32 v{A1}, 0xffff0000, v{PK}")
            a(f"v_mul_f32 v{A0}, v{A0}, v{V+4*ta+c}")
            a(f"v_mul_f32 v{A1}, v{A1}, v{V+4*tb+c}")
            a(f"v_cvt_pk_bf16_f32 v{84+pr}, v{A0}, v{A1}")
        a.lds(f"ds_write_b64 v77, v[84:85] offset:{c*CH_STRIDE}")
        a("s_nop 0")
    a("v_mov_b32 v86, 0")
    a("v_mov_b32 v87, 0")
    a("v_lshlrev_b32 v88, 3, v0")
    a(f"v_add_u32 v88, {XB_OFF+4096}, v88")
    a("v_cmp_gt_u32 vcc, 64, v0")
    a("s_and_saveexec_b64 s[74:75], vcc")
    for c in range(4):
        a.lds(f"ds_write_b64 v88, v[86:87] offset:{c*CH_STRIDE}")
    a("s_mov_b64 exec, s[74:75]")
    a("s_movk_i32 s73, %d" % CH_STRIDE)
    a("v_mul_lo_u32 v89, v4, s73")
    a("v_lshl_add_u32 v89, v5, 4, v89")
    for p in range(3):
        a.wait_vm(f"h{p}")
        Dr, Er, Fr = HC+12*p, HC+12*p+4, HC+12*p+8
        if p == 0:
            a("v_cmp_gt_u32 vcc, 2, v5")
            a("v_cmp_eq_u32 s[76:77], 1, v5")
            a("v_mov_b32 v90, 0")
            a("s_nop 0")
            a(f"v_cndmask_b32 v91, v90, v{Fr+1}, s[76:77]")
            a(f"v_cndmask_b32 v{Fr+3}, v{Fr+3}, v91, vcc")
            a(f"v_cndmask_b32 v91, v90, v{Fr+0}, s[76:77]")
            a(f"v_cndmask_b32 v{Fr+2}, v{Fr+2}, v91, vcc")
            a(f"v_cndmask_b32 v{Fr+1}, v{Fr+1}, v90, vcc")
            a(f"v_cndmask_b32 v{Fr+0}, v{Fr+0}, v90, vcc")
            a(f"v_cndmask_b32 v91, v90, v{Er+0}, s[76:77]")
            a(f"v_cndmask_b32 v{Er+3}, v{Er+3}, v91, vcc")
            for m in range(3):
                a(f"v_cndmask_b32 v{Er+m}, v{Er+m}, v90, vcc")
            for m in range(4):
                a(f"v_cndmask_b32 v{Dr+m}, v{Dr+m}, v90, vcc")
        if p == 2:
            a("v_cmp_gt_u32 vcc, 2, v5")
            a("s_and_saveexec_b64 s[74:75], vcc")
        for m in range(4):
            a(f"v_alignbit_b32 v{92+m}, v{Er+m}, v{Dr+m}, 16")
            a(f"v_alignbit_b32 v{96+m}, v{Fr+m}, v{Er+m}, 16")
        off = 2048 * p
        a.lds(f"ds_write_b128 v89, v[{Dr}:{Dr+3}] offset:{off}")
        a.lds(f"ds_write_b128 v89, v[92:95] offset:{off+COPY_STRIDE}")
        a.lds(f"ds_write_b128 v89, v[{Er}:{Er+3}] offset:{off+2*COPY_STRIDE}")
        a.lds(f"ds_write_b128 v89, v[96:99] offset:{off+3*COPY_STRIDE}")
        a("s_nop 1")
        if p == 2:
            a("s_mov_b64 exec, s[74:75]")
    a.wait_all()
    a("s_barrier")
    st(2)
    a("v_lshrrev_b32 v1, 6, v0")
    a("s_nop 0")
    a("v_readfirstlane_b32 s78, v1")
    a("v_and_b32 v2, 15, v0")
    a("v_bfe_u32 v3, v0, 4, 2")
    a("v_add_u32 v5, 1, v2")
    a("v_and_b32 v6, 3, v5")
    a("v_sub_u32 v5, v5, v6")
    a("v_lshl_add_u32 v5, v3, 2, v5")
    a("v_lshlrev_b32 v5, 1, v5")
    a(f"s_movk_i32 s73, {COPY_STRIDE}")
    a("v_mul_lo_u32 v6, v6, s73")
    a("v_add_u32 v5, v5, v6")
    a(f"s_movk_i32 s73, {CH_STRIDE}")
    a("v_mul_lo_u32 v6, v4, s73")
    a("v_add_u32 v5, v5, v6")
    a("v_lshlrev_b32 v7, 5, v2")
    a(f"v_sub_u32 v7, {XB_OFF+480}, v7")
    a("v_lshl_add_u32 v7, v3, 3, v7")
    a("v_add_u32 v7, v7, v6")
    a("s_lshr_b32 s80, s78, 1")
    a("s_mov_b32 s79, s66")
    a("s_cmp_eq_u32 s80, 1")
    a("s_cselect_b32 s79, s67, s79")
    a("s_cmp_eq_u32 s80, 2")
    a("s_cselect_b32 s79, s68, s79")
    a("s_cmp_eq_u32 s80, 3")
    a("s_cselect_b32 s79, s69, s79")
    a("s_and_b32 s81, s78, 1")
    a("s_cmp_eq_u32 s81, 1")
    a("s_cbranch_scc1 L_conv_set1")
    for si, tiles in enumerate(((7, 5, 2, 0), (6, 4, 3, 1))):
        if si == 1:
            a.label("L_conv_set1")
        mx = max(tiles)
        ACC = 8
        FR = 32
        for k in range(16):
            a(f"v_mov_b32 v{ACC+k}, 0")
        def load(w):
            bs = w & 1
            for u in range(mx + 1):
                kb = 8*u + w
                a.lds(f"ds_read_b64 v[{FR+64*bs+4*u}:{FR+64*bs+4*u+1}], v5 offset:{64*kb}", f"w{w}")
                a.lds(f"ds_read_b64 v[{FR+64*bs+4*u+2}:{FR+64*bs+4*u+3}], v5 offset:{64*kb+32}", f"w{w}")
            for e in range(mx + 1):
                off = 2*(256*(7-e) + 32*w)
                a.lds(f"ds_read_b64 v[{FR+64*bs+32+4*e}:{FR+64*bs+32+4*e+1}], v7 offset:{off}", f"w{w}")
                a.lds(f"ds_read_b64 v[{FR+64*bs+32+4*e+2}:{FR+64*bs+32+4*e+3}], v7 offset:{off+32}", f"w{w}")
        load(0)
        for w in range(8):
            a.wait_all(vm=False)
            if w < 7:
                load(w + 1)
            bs = w & 1
            for k, i in enumerate(tiles):
                for u in range(i + 1):
                    e = i - u
                    a(f"v_mfma_f32_16x16x32_bf16 v[{ACC+4*k}:{ACC+4*k+3}], v[{FR+64*bs+4*u}:{FR+64*bs+4*u+3}], v[{FR+64*bs+32+4*e}:{FR+64*bs+32+4*e+3}], v[{ACC+4*k}:{ACC+4*k+3}]")
        a("v_lshlrev_b32 v1, 4, v3")
        a("v_sub_u32 v1, v7, v1")
        for k, i in enumerate(tiles):
            a.lds(f"ds_read_b64 v[{160+2*k}:{161+2*k}], v1 offset:{3608-512*i}")
        a.wait_all(vm=False)
        a("s_nop 7")
        a("s_barrier")
        a("v_lshlrev_b32 v1, 7, v2")
        a("v_lshl_add_u32 v1, v3, 5, v1")
        a("v_lshl_add_u32 v1, v4, 1, v1")
        for k, i in enumerate(tiles):
            ac = ACC + 4*k
            kv = 160 + 2*k
            a(f"v_and_b32 v170, 0xffff0000, v{kv+1}")
            a(f"v_lshlrev_b32 v171, 16, v{kv+1}")
            a(f"v_and_b32 v172, 0xffff0000, v{kv}")
            a(f"v_lshlrev_b32 v173, 16, v{kv}")
            for r in range(4):
                a(f"v_mul_f32 v{170+r}, s79, v{170+r}")
            a("v_cvt_pk_bf16_f32 v174, v170, v171")
            a("v_cvt_pk_bf16_f32 v175, v172, v173")
            a(f"v_cvt_pk_bf16_f32 v176, v{ac}, v{ac+1}")
            a(f"v_cvt_pk_bf16_f32 v177, v{ac+2}, v{ac+3}")
            for hh in range(2):
                a(f"v_lshlrev_b32 v170, 16, v{174+hh}")
                a(f"v_and_b32 v171, 0xffff0000, v{174+hh}")
                a(f"v_lshlrev_b32 v172, 16, v{176+hh}")
                a(f"v_and_b32 v173, 0xffff0000, v{176+hh}")
                a("v_add_f32 v170, v170, v172")
                a("v_add_f32 v171, v171, v173")
                a(f"v_cvt_pk_bf16_f32 v{178+hh}, v170, v171")
            base = 2048 * i
            a.lds(f"ds_write_b16 v1, v178 offset:{base}")
            a.lds(f"ds_write_b16_d16_hi v1, v178 offset:{base+8}")
            a.lds(f"ds_write_b16 v1, v179 offset:{base+16}")
            a.lds(f"ds_write_b16_d16_hi v1, v179 offset:{base+24}")
        a.wait_all(vm=False)
        if si == 0:
            a("s_branch L_conv_join")
    a.label("L_conv_join")
    a("s_barrier")
    st(3)
    a("v_lshlrev_b32 v1, 5, v0")
    a.lds("ds_read_b128 v[8:11], v1")
    a.lds("ds_read_b128 v[12:15], v1 offset:16")
    a("s_movk_i32 s73, 4608")
    a("v_mul_lo_u32 v2, v0, s73")
    a("v_add_u32 v2, s36, v2")
    a.wait_all(vm=False)
    for r in range(4):
        a.vmem(f"buffer_store_dwordx2 v[{8+2*r}:{9+2*r}], v2, s[32:35], 0 offen offset:{1152*r}")
    if T:
        a("s_waitcnt vmcnt(0)")
        st(4)
        for i in range(1,5):
            a(f"s_sub_u32 s{84+2*i}, s{84+2*i}, s84")
        make_srd(a, 20, 16, 1<<20, add=(48<<20))
        for i in range(1,5):
            a(f"v_mov_b32 v{3+i}, s{84+2*i}")
        a("s_lshl_b32 s70, s2, 3")
        a("s_add_u32 s70, s70, s78")
        a("s_lshl_b32 s70, s70, 4")
        a("v_mov_b32 v3, s70")
        a("buffer_store_dwordx4 v[4:7], v3, s[20:23], 0 offen")
    a("s_endpgm")

def gen_prep(T=False):
    a = Asm()
    a.raw(kernel_header("prep_kernel"))
    a(f"s_cmp_ge_u32 s2, {N_CONV_WG+N_LN_WG}")
    a("s_cbranch_scc1 L_prep_exit")
    a("s_load_dwordx4 s[4:7], s[0:1], 0")
    a("s_load_dwordx4 s[8:11], s[0:1], 16")
    a("s_load_dwordx4 s[12:15], s[0:1], 32")
    a("s_load_dwordx2 s[16:17], s[0:1], 96")
    a("s_waitcnt lgkmcnt(0)")
    a(f"s_cmp_ge_u32 s2, {N_CONV_WG}")
    a("s_cbranch_scc1 L_prep_ln")
    gen_conv(a, T)
    a.label("L_prep_ln")
    a.vm = []; a.lg = []
    gen_ln(a)
    a.label("L_prep_exit")
    a("s_endpgm")
    return a.text(), kernel_desc("prep_kernel", 184, 96, 184), f"; @launch kernel=prep_kernel grid=({N_CONV_WG+N_LN_WG},1,1) block=(512,1,1) lds={PREP_LDS}"
```

```python
from asmlib import *
from gen_prep import dpp_sum8, div_by_576, round_bf16

N_LN, N_KV, N_CP, N_PF = 64, 144, 0, 256

def gen_ln(a):
    a.comment("---------------- LayerNorm path: 8 rows per wave, 32 rows per WG ----------------")
    make_srd(a, 20, 4, NB_ACT)
    make_srd(a, 24, 16, NB_ACT, add=WS_XNF)
    make_srd(a, 28, 16, NB_ACT, add=WS_XNR)
    a("s_lshl_b32 s3, s2, 5")
    a("v_lshrrev_b32 v3, 3, v0")
    a("v_add_u32 v3, s3, v3")
    a("v_and_b32 v4, 7, v0")
    a("s_movk_i32 s73, 1152")
    a("v_mul_lo_u32 v5, v3, s73")
    a("v_lshl_add_u32 v5, v4, 4, v5")
    for i in range(9):
        a.vmem(f"buffer_load_dwordx4 v[{8+4*i}:{11+4*i}], v5, s[20:23], 0 offen offset:{128*i}")
    a("s_mov_b32 s70, 0x3ae38e39")
    a("s_mov_b32 s71, 0x44100000")
    a("s_mov_b32 s72, 0x3727c5ac")
    a("v_lshrrev_b32 v6, 4, v3")
    a("s_movk_i32 s73, 18432")
    a("v_mul_lo_u32 v6, v6, s73")
    a("v_lshrrev_b32 v7, 2, v4")
    a("v_lshl_add_u32 v6, v7, 10, v6")
    a("v_and_b32 v7, 3, v4")
    a("v_lshl_add_u32 v6, v7, 8, v6")
    a("v_and_b32 v7, 15, v3")
    a("v_lshl_add_u32 v6, v7, 4, v6")
    a.wait_all()
    X = 44
    for d in range(36):
        a(f"v_lshlrev_b32 v{X+2*d}, 16, v{8+d}")
        a(f"v_and_b32 v{X+2*d+1}, 0xffff0000, v{8+d}")
    for k in range(4):
        a(f"v_add_f32 v{116+k}, v{X+k}, v{X+4+k}")
    for e in range(8, 72):
        a(f"v_add_f32 v{116+(e&3)}, v{116+(e&3)}, v{X+e}")
    a("v_add_f32 v116, v116, v117")
    a("v_add_f32 v118, v118, v119")
    a("v_add_f32 v116, v116, v118")
    dpp_sum8(a, 116, 117)
    div_by_576(a, 116, 117, 118)
    for k in range(4):
        a(f"v_mov_b32 v{120+k}, 0")
    for e in range(72):
        a(f"v_sub_f32 v{124+(e&1)}, v{X+e}, v116")
        a(f"v_fmac_f32 v{120+(e&3)}, v{124+(e&1)}, v{124+(e&1)}")
    a("v_add_f32 v120, v120, v121")
    a("v_add_f32 v122, v122, v123")
    a("v_add_f32 v120, v120, v122")
    dpp_sum8(a, 120, 121)
    div_by_576(a, 120, 121, 122)
    round_bf16(a, 120)
    round_bf16(a, 116)
    a("v_add_f32 v120, s72, v120")
    round_bf16(a, 120)
    a("v_sqrt_f32 v120, v120")
    a("s_nop 0")
    round_bf16(a, 120)
    a("v_rcp_f32 v121, v120")
    a("s_nop 0")
    a("v_fma_f32 v122, -v120, v121, 1.0")
    a("v_fma_f32 v121, v122, v121, v121")
    for d in range(36):
        x0, x1 = X + 2*d, X + 2*d + 1
        a(f"v_sub_f32 v{x0}, v{x0}, v116")
        a(f"v_sub_f32 v{x1}, v{x1}, v116")
        a(f"v_cvt_pk_bf16_f32 v124, v{x0}, v{x1}")
        a(f"v_lshlrev_b32 v{x0}, 16, v124")
        a(f"v_and_b32 v{x1}, 0xffff0000, v124")
        a(f"v_mul_f32 v125, v{x0}, v121")
        a(f"v_mul_f32 v126, v{x1}, v121")
        a(f"v_fma_f32 v{x0}, -v125, v120, v{x0}")
        a(f"v_fma_f32 v{x1}, -v126, v120, v{x1}")
        a(f"v_fma_f32 v125, v{x0}, v121, v125")
        a(f"v_fma_f32 v126, v{x1}, v121, v126")
        a(f"v_cvt_pk_bf16_f32 v{8+d}, v125, v126")
        if d % 4 == 3:
            i = d // 4
            a(f"s_movk_i32 s73, {2048*i}")
            a.vmem(f"buffer_store_dwordx4 v[{8+4*i}:{11+4*i}], v6, s[24:27], s73 offen")
            a.vmem(f"buffer_store_dwordx4 v[{8+4*i}:{11+4*i}], v5, s[28:31], 0 offen offset:{128*i}")
    pend(a)

def gen_kv(a):
    a.comment("---------------- kv path: thread = (4 t) x (8 channels) ----------------")
    make_srd(a, 20, 6, NB_ACT)
    make_srd(a, 24, 8, NB_ACT)
    make_srd(a, 28, 10, D * 8)
    make_srd(a, 32, 16, NB_XR, add=WS_XR)
    a(f"s_sub_u32 s3, s2, {N_LN}")
    a("s_mul_i32 s70, s3, 7282")
    a("s_lshr_b32 s70, s70, 16")
    a("s_mul_i32 s71, s70, 9")
    a("s_sub_u32 s71, s3, s71")
    a("s_lshl_b32 s70, s70, 5")
    a("s_lshl_b32 s71, s71, 3")
    a("v_lshrrev_b32 v2, 3, v0")
    a("v_add_u32 v2, s70, v2")
    a("v_and_b32 v3, 7, v0")
    a("v_add_u32 v3, s71, v3")
    a("s_movk_i32 s73, 4608")
    a("v_mul_lo_u32 v4, v2, s73")
    a("v_lshl_add_u32 v4, v3, 4, v4")
    a("v_subrev_u32 v5, 3456, v4")
    a("v_cmp_eq_u32 vcc, 0, v2")
    a("v_mov_b32 v6, 0x7fffff00")
    a("s_nop 0")
    a("v_cndmask_b32 v5, v5, v6, vcc")
    KR, VR, WR = 8, 36, 52
    for r in range(3):
        a.vmem(f"buffer_load_dwordx4 v[{KR+4*r}:{KR+4*r+3}], v5, s[20:23], 0 offen offset:{1152*r}")
    for r in range(3, 7):
        a.vmem(f"buffer_load_dwordx4 v[{KR+4*r}:{KR+4*r+3}], v4, s[20:23], 0 offen offset:{1152*(r-3)}")
    for r in range(4):
        a.vmem(f"buffer_load_dwordx4 v[{VR+4*r}:{VR+4*r+3}], v4, s[24:27], 0 offen offset:{1152*r}")
    a("v_lshlrev_b32 v6, 6, v3")
    for r in range(4):
        a.vmem(f"buffer_load_dwordx4 v[{WR+4*r}:{WR+4*r+3}], v6, s[28:31], 0 offen offset:{16*r}")
    a("s_mov_b32 s73, 36864")
    a("v_mul_lo_u32 v7, v3, s73")
    a("v_lshlrev_b32 v1, 3, v2")
    a("v_sub_u32 v7, v7, v1")
    a("v_add_u32 v7, 4088, v7")
    a.wait_all()
    a("s_cmp_lg_u32 s70, 0")
    a("s_cbranch_scc1 L_kv_nopad")
    for i in range(4):
        a(f"v_mov_b32 v{120+i}, 0")
    a("v_lshrrev_b32 v1, 5, v0")
    a("s_lshl_b32 s73, s71, 3")
    a("v_add_u32 v1, s73, v1")
    a(f"s_movk_i32 s73, {XR_STRIDE}")
    a("v_mul_lo_u32 v1, v1, s73")
    a("v_and_b32 v2, 31, v0")
    a("v_lshl_add_u32 v1, v2, 4, v1")
    a("v_add_u32 v1, 4096, v1")
    for i in range(8):
        a(f"s_mov_b32 s73, {8*i*XR_STRIDE}")
        a.vmem("buffer_store_dwordx4 v[120:123], v1, s[32:35], s73 offen")
    a("s_nop 1")
    a.label("L_kv_nopad")
    K, V, W = 72, 100, 116
    for c in range(8):
        dw, hi = c >> 1, c & 1
        def unp(dst, src):
            if hi: a(f"v_and_b32 v{dst}, 0xffff0000, v{src}")
            else:  a(f"v_lshlrev_b32 v{dst}, 16, v{src}")
        for r in range(7): unp(K + r, KR + 4*r + dw)
        for r in range(4): unp(V + r, VR + 4*r + dw)
        a(f"v_lshlrev_b32 v{W}, 16, v{WR+2*c}")
        a(f"v_and_b32 v{W+1}, 0xffff0000, v{WR+2*c}")
        a(f"v_lshlrev_b32 v{W+2}, 16, v{WR+2*c+1}")
        a(f"v_and_b32 v{W+3}, 0xffff0000, v{WR+2*c+1}")
        o = 124 + 2 * (c & 1)
        for pr, (ta, tb) in enumerate(((3, 2), (1, 0))):
            A0, A1, T0, T1, PK = 104, 105, 106, 107, 108
            for tau in range(4):
                w = W + 3 - tau
                d0, d1 = (A0, A1) if tau == 0 else (T0, T1)
                a(f"v_mul_f32 v{d0}, v{w}, v{K+ta+tau}")
                a(f"v_mul_f32 v{d1}, v{w}, v{K+tb+tau}")
                a(f"v_cvt_pk_bf16_f32 v{PK}, v{d0}, v{d1}")
                a(f"v_lshlrev_b32 v{d0}, 16, v{PK}")
                a(f"v_and_b32 v{d1}, 0xffff0000, v{PK}")
                if tau > 0:
                    a(f"v_add_f32 v{A0}, v{A0}, v{T0}")
                    a(f"v_add_f32 v{A1}, v{A1}, v{T1}")
                    a(f"v_cvt_pk_bf16_f32 v{PK}, v{A0}, v{A1}")
                    a(f"v_lshlrev_b32 v{A0}, 16, v{PK}")
                    a(f"v_and_b32 v{A1}, 0xffff0000, v{PK}")
            a(f"v_mul_f32 v{A0}, v{A0}, v{V+ta}")
            a(f"v_mul_f32 v{A1}, v{A1}, v{V+tb}")
            a(f"v_cvt_pk_bf16_f32 v{o+pr}, v{A0}, v{A1}")
        a(f"s_mov_b32 s73, {c*XR_STRIDE}")
        a.vmem(f"buffer_store_dwordx2 v[{o}:{o+1}], v7, s[32:35], s73 offen")
    pend(a)

def gen_copy(a):
    a.comment("---------------- filter copy path: one channel per wave ----------------")
    make_srd(a, 20, 12, NB_ACT)
    make_srd(a, 24, 16, NB_HP, add=WS_HP)
    make_srd(a, 28, 16, NB_XR, add=WS_XR)
    a(f"s_sub_u32 s3, s2, {N_LN+N_KV}")
    a("s_lshl_b32 s3, s3, 2")
    a("v_lshrrev_b32 v1, 6, v0")
    a("v_add_u32 v1, s3, v1")
    a("v_and_b32 v2, 63, v0")
    a("v_lshlrev_b32 v3, 12, v1")
    a("v_lshl_add_u32 v3, v2, 4, v3")
    for i in range(4):
        a.vmem(f"buffer_load_dwordx4 v[{8+4*i}:{11+4*i}], v3, s[20:23], 0 offen offset:{1024*i}")
    a(f"s_movk_i32 s73, {HP_STRIDE}")
    a("v_mul_lo_u32 v4, v1, s73")
    a("v_lshl_add_u32 v5, v2, 4, v4")
    a(f"s_movk_i32 s73, {XR_STRIDE}")
    a("v_mul_lo_u32 v6, v1, s73")
    a("v_lshl_add_u32 v6, v2, 3, v6")
    for i in range(4):
        a(f"v_mov_b32 v{24+i}, 0")
    a("s_movk_i32 s73, 4096")
    a.vmem("buffer_store_dwordx2 v[24:25], v6, s[28:31], s73 offen")
    a("v_cmp_gt_u32 vcc, 2, v2")
    a("s_and_saveexec_b64 s[74:75], vcc")
    a.vmem("buffer_store_dwordx4 v[24:27], v5, s[24:27], 0 offen")
    a("s_movk_i32 s73, 4128")
    a.vmem("buffer_store_dwordx4 v[24:27], v5, s[24:27], s73 offen")
    a("s_mov_b64 exec, s[74:75]")
    a("s_waitcnt vmcnt(3)")
    for i in range(4):
        a.vmem(f"buffer_store_dwordx4 v[{8+4*i}:{11+4*i}], v5, s[24:27], 0 offen offset:{1024*i+32}")
    pend(a)

def gen_pf(a, pf_wd=True):
    a.comment("---------------- weight prefetch into the L2 of the XCD that will use them ----------------")
    a("s_load_dwordx4 s[40:43], s[0:1], 56")
    a("s_load_dwordx2 s[44:45], s[0:1], 72")
    a(f"s_sub_u32 s3, s2, {N_LN+N_KV+N_CP}")
    a("s_and_b32 s70, s3, 7")
    a("s_lshr_b32 s71, s3, 3")
    a("s_waitcnt lgkmcnt(0)")
    make_srd(a, 20, 40, NB_W)
    make_srd(a, 24, 42, NB_W)
    make_srd(a, 28, 44, NB_W)
    a("s_mul_i32 s72, s71, %d" % (18 * 9216))
    a("s_mul_i32 s73, s70, 1152")
    a("s_add_u32 s72, s72, s73")
    a("s_mov_b32 s74, 0x38e38e4")
    a("s_movk_i32 s75, 9216")
    for it in range(6):
        a(f"v_add_u32 v1, {256*it}, v0")
        a("v_mul_hi_u32 v2, v1, s74")
        a("v_mul_u32_u24 v3, 72, v2")
        a("v_sub_u32 v3, v1, v3")
        a("v_mul_lo_u32 v2, v2, s75")
        a("v_lshl_add_u32 v2, v3, 4, v2")
        a("v_add_u32 v2, s72, v2")
        if it == 5:
            a("v_cmp_gt_u32 vcc, 16, v0")
            a("s_and_saveexec_b64 s[76:77], vcc")
        a(f"buffer_load_dwordx4 v[{8+8*it}:{11+8*it}], v2, s[20:23], 0 offen")
        a(f"buffer_load_dwordx4 v[{12+8*it}:{15+8*it}], v2, s[24:27], 0 offen")
        if it == 5:
            a("s_mov_b64 exec, s[76:77]")
    if pf_wd:
        a("s_lshr_b32 s72, s70, 1")
        a("s_mul_i32 s72, s72, 1327104")
        a("s_mul_i32 s73, s71, 41472")
        a("s_add_u32 s72, s72, s73")
        a("v_lshlrev_b32 v1, 4, v0")
        a("v_add_u32 v1, s72, v1")
        for it in range(11):
            a(f"s_mov_b32 s73, {4096*it}")
            if it == 10:
                a("v_cmp_gt_u32 vcc, 32, v0")
                a("s_and_saveexec_b64 s[76:77], vcc")
            a(f"buffer_load_dwordx4 v[{64+4*it}:{67+4*it}], v1, s[28:31], s73 offen")
    pend(a)

STAMP = [False]
def pend(a):
    if STAMP[0]:
        a("s_mov_b64 exec, -1")
        a("s_waitcnt vmcnt(0)")
        a("s_memtime s[92:93]")
        a("s_memrealtime s[86:87]")
        a("s_waitcnt lgkmcnt(0)")
        a("s_sub_u32 s92, s92, s90")
        make_srd(a, 80, 16, 1<<20, add=(60<<20))
        a("v_mov_b32 v4, s92")
        a("v_mov_b32 v5, s88")
        a("v_mov_b32 v6, s86")
        a("v_mov_b32 v7, 0")
        a("v_lshrrev_b32 v3, 6, v0")
        a("s_lshl_b32 s85, s2, 2")
        a("v_add_u32 v3, s85, v3")
        a("v_lshlrev_b32 v3, 4, v3")
        a("buffer_store_dwordx4 v[4:7], v3, s[80:83], 0 offen")
    a("s_endpgm")

def gen_prep(pf_wd=True, T=False):
    STAMP[0] = T
    a = Asm()
    a.raw(kernel_header("prep_kernel"))
    if T:
        a("s_memtime s[90:91]")
        a("s_memrealtime s[88:89]")
    tot = N_LN + N_KV + N_CP + N_PF
    a(f"s_cmp_ge_u32 s2, {tot}")
    a("s_cbranch_scc1 L_prep_exit")
    a("s_load_dwordx4 s[4:7], s[0:1], 0")
    a("s_load_dwordx4 s[8:11], s[0:1], 16")
    a("s_load_dwordx4 s[12:15], s[0:1], 32")
    a("s_load_dwordx2 s[16:17], s[0:1], 96")
    a("s_waitcnt lgkmcnt(0)")
    a(f"s_cmp_ge_u32 s2, {N_LN+N_KV+N_CP}")
    a("s_cbranch_scc1 L_prep_pf")
    a(f"s_cmp_ge_u32 s2, {N_LN}")
    a("s_cbranch_scc1 L_prep_kv")
    gen_ln(a)
    a.label("L_prep_kv"); a.vm = []; a.lg = []
    gen_kv(a)
    a.label("L_prep_pf"); a.vm = []; a.lg = []
    gen_pf(a, pf_wd)
    a.label("L_prep_exit")
    a("s_endpgm")
    return a.text(), kernel_desc("prep_kernel", 128, 96, 128), f"; @launch kernel=prep_kernel grid=({tot},1,1) block=(256,1,1) lds=0"
```

```python
import sys
from build import build
import gen_prep3, gen_gemm4, gen_final
abl = tuple(sys.argv[2]) if len(sys.argv) > 2 else ()
parts = [gen_prep3.gen_prep(T=('T' in abl), pf_wd=False), gen_gemm4.gen_gemm(1, abl), gen_gemm4.gen_gemm(2, abl), gen_final.gen_final()]
build(parts, sys.argv[1])
```

```python
from asmlib import *
from gen_prep import dpp_sum8, div_by_576, round_bf16

N_LN, N_KV, N_CP, N_PF = 64, 144, 0, 256

def gen_ln(a):
    a.comment("---------------- LayerNorm path: 8 rows per wave, 32 rows per WG ----------------")
    make_srd(a, 20, 4, NB_ACT)
    make_srd(a, 24, 16, NB_ACT, add=WS_XNF)
    make_srd(a, 28, 16, NB_ACT, add=WS_XNR)
    a("s_lshl_b32 s3, s2, 5")
    a("v_lshrrev_b32 v3, 3, v0")
    a("v_add_u32 v3, s3, v3")
    a("v_and_b32 v4, 7, v0")
    a("s_movk_i32 s73, 1152")
    a("v_mul_lo_u32 v5, v3, s73")
    a("v_lshl_add_u32 v5, v4, 4, v5")
    for i in range(9):
        a.vmem(f"buffer_load_dwordx4 v[{8+4*i}:{11+4*i}], v5, s[20:23], 0 offen offset:{128*i}")
    a("s_mov_b32 s70, 0x3ae38e39")
    a("s_mov_b32 s71, 0x44100000")
    a("s_mov_b32 s72, 0x3727c5ac")
    a("v_lshrrev_b32 v6, 4, v3")
    a("s_movk_i32 s73, 18432")
    a("v_mul_lo_u32 v6, v6, s73")
    a("v_lshrrev_b32 v7, 2, v4")
    a("v_lshl_add_u32 v6, v7, 10, v6")
    a("v_and_b32 v7, 3, v4")
    a("v_lshl_add_u32 v6, v7, 8, v6")
    a("v_and_b32 v7, 15, v3")
    a("v_lshl_add_u32 v6, v7, 4, v6")
    a.wait_all()
    X = 44
    for d in range(36):
        a(f"v_lshlrev_b32 v{X+2*d}, 16, v{8+d}")
        a(f"v_and_b32 v{X+2*d+1}, 0xffff0000, v{8+d}")
    for k in range(4):
        a(f"v_add_f32 v{116+k}, v{X+k}, v{X+4+k}")
    for e in range(8, 72):
        a(f"v_add_f32 v{116+(e&3)}, v{116+(e&3)}, v{X+e}")
    a("v_add_f32 v116, v116, v117")
    a("v_add_f32 v118, v118, v119")
    a("v_add_f32 v116, v116, v118")
    dpp_sum8(a, 116, 117)
    div_by_576(a, 116, 117, 118)
    for k in range(4):
        a(f"v_mov_b32 v{120+k}, 0")
    for e in range(72):
        a(f"v_sub_f32 v{124+(e&1)}, v{X+e}, v116")
        a(f"v_fmac_f32 v{120+(e&3)}, v{124+(e&1)}, v{124+(e&1)}")
    a("v_add_f32 v120, v120, v121")
    a("v_add_f32 v122, v122, v123")
    a("v_add_f32 v120, v120, v122")
    dpp_sum8(a, 120, 121)
    div_by_576(a, 120, 121, 122)
    round_bf16(a, 120)
    round_bf16(a, 116)
    a("v_add_f32 v120, s72, v120")
    round_bf16(a, 120)
    a("v_sqrt_f32 v120, v120")
    a("s_nop 0")
    round_bf16(a, 120)
    a("v_rcp_f32 v121, v120")
    a("s_nop 0")
    a("v_fma_f32 v122, -v120, v121, 1.0")
    a("v_fma_f32 v121, v122, v121, v121")
    for d in range(36):
        x0, x1 = X + 2*d, X + 2*d + 1
        a(f"v_sub_f32 v{x0}, v{x0}, v116")
        a(f"v_sub_f32 v{x1}, v{x1}, v116")
        a(f"v_cvt_pk_bf16_f32 v124, v{x0}, v{x1}")
        a(f"v_lshlrev_b32 v{x0}, 16, v124")
        a(f"v_and_b32 v{x1}, 0xffff0000, v124")
        a(f"v_mul_f32 v125, v{x0}, v121")
        a(f"v_mul_f32 v126, v{x1}, v121")
        a(f"v_fma_f32 v{x0}, -v125, v120, v{x0}")
        a(f"v_fma_f32 v{x1}, -v126, v120, v{x1}")
        a(f"v_fma_f32 v125, v{x0}, v121, v125")
        a(f"v_fma_f32 v126, v{x1}, v121, v126")
        a(f"v_cvt_pk_bf16_f32 v{8+d}, v125, v126")
        if d % 4 == 3:
            i = d // 4
            a(f"s_movk_i32 s73, {2048*i}")
            a.vmem(f"buffer_store_dwordx4 v[{8+4*i}:{11+4*i}], v6, s[24:27], s73 offen")
            a.vmem(f"buffer_store_dwordx4 v[{8+4*i}:{11+4*i}], v5, s[28:31], 0 offen offset:{128*i}")
    pend(a)

def gen_kv(a):
    a.comment("---------------- kv path: thread = (4 t) x (8 channels) ----------------")
    make_srd(a, 20, 6, NB_ACT)
    make_srd(a, 24, 8, NB_ACT)
    make_srd(a, 28, 10, D * 8)
    make_srd(a, 32, 16, NB_XR, add=WS_XR)
    a(f"s_sub_u32 s3, s2, {N_LN}")
    a("s_mul_i32 s70, s3, 7282")
    a("s_lshr_b32 s70, s70, 16")
    a("s_mul_i32 s71, s70, 9")
    a("s_sub_u32 s71, s3, s71")
    a("s_lshl_b32 s70, s70, 5")
    a("s_lshl_b32 s71, s71, 3")
    a("v_lshrrev_b32 v2, 3, v0")
    a("v_add_u32 v2, s70, v2")
    a("v_and_b32 v3, 7, v0")
    a("v_add_u32 v3, s71, v3")
    a("s_movk_i32 s73, 4608")
    a("v_mul_lo_u32 v4, v2, s73")
    a("v_lshl_add_u32 v4, v3, 4, v4")
    a("v_subrev_u32 v5, 3456, v4")
    a("v_cmp_eq_u32 vcc, 0, v2")
    a("v_mov_b32 v6, 0x7fffff00")
    a("s_nop 0")
    a("v_cndmask_b32 v5, v5, v6, vcc")
    KR, VR, WR = 8, 36, 52
    for r in range(3):
        a.vmem(f"buffer_load_dwordx4 v[{KR+4*r}:{KR+4*r+3}], v5, s[20:23], 0 offen offset:{1152*r}")
    for r in range(3, 7):
        a.vmem(f"buffer_load_dwordx4 v[{KR+4*r}:{KR+4*r+3}], v4, s[20:23], 0 offen offset:{1152*(r-3)}")
    for r in range(4):
        a.vmem(f"buffer_load_dwordx4 v[{VR+4*r}:{VR+4*r+3}], v4, s[24:27], 0 offen offset:{1152*r}")
    a("v_lshlrev_b32 v6, 6, v3")
    for r in range(4):
        a.vmem(f"buffer_load_dwordx4 v[{WR+4*r}:{WR+4*r+3}], v6, s[28:31], 0 offen offset:{16*r}")
    a("s_mov_b32 s73, 36864")
    a("v_mul_lo_u32 v7, v3, s73")
    a("v_lshlrev_b32 v1, 3, v2")
    a("v_sub_u32 v7, v7, v1")
    a("v_add_u32 v7, 4088, v7")
    a.wait_all()
    a("s_cmp_lg_u32 s70, 0")
    a("s_cbranch_scc1 L_kv_nopad")
    for i in range(4):
        a(f"v_mov_b32 v{120+i}, 0")
    a("v_lshrrev_b32 v1, 5, v0")
    a("s_lshl_b32 s73, s71, 3")
    a("v_add_u32 v1, s73, v1")
    a(f"s_movk_i32 s73, {XR_STRIDE}")
    a("v_mul_lo_u32 v1, v1, s73")
    a("v_and_b32 v2, 31, v0")
    a("v_lshl_add_u32 v1, v2, 4, v1")
    a("v_add_u32 v1, 4096, v1")
    for i in range(8):
        a(f"s_mov_b32 s73, {8*i*XR_STRIDE}")
        a.vmem("buffer_store_dwordx4 v[120:123], v1, s[32:35], s73 offen")
    a("s_nop 1")
    a.label("L_kv_nopad")
    K, V, W = 72, 100, 116
    for c in range(8):
        dw, hi = c >> 1, c & 1
        def unp(dst, src):
            if hi: a(f"v_and_b32 v{dst}, 0xffff0000, v{src}")
            else:  a(f"v_lshlrev_b32 v{dst}, 16, v{src}")
        for r in range(7): unp(K + r, KR + 4*r + dw)
        for r in range(4): unp(V + r, VR + 4*r + dw)
        a(f"v_lshlrev_b32 v{W}, 16, v{WR+2*c}")
        a(f"v_and_b32 v{W+1}, 0xffff0000, v{WR+2*c}")
        a(f"v_lshlrev_b32 v{W+2}, 16, v{WR+2*c+1}")
        a(f"v_and_b32 v{W+3}, 0xffff0000, v{WR+2*c+1}")
        o = 124 + 2 * (c & 1)
        for pr, (ta, tb) in enumerate(((3, 2), (1, 0))):
            A0, A1, T0, T1, PK = 104, 105, 106, 107, 108
            for tau in range(4):
                w = W + 3 - tau
                d0, d1 = (A0, A1) if tau == 0 else (T0, T1)
                a(f"v_mul_f32 v{d0}, v{w}, v{K+ta+tau}")
                a(f"v_mul_f32 v{d1}, v{w}, v{K+tb+tau}")
                a(f"v_cvt_pk_bf16_f32 v{PK}, v{d0}, v{d1}")
                a(f"v_lshlrev_b32 v{d0}, 16, v{PK}")
                a(f"v_and_b32 v{d1}, 0xffff0000, v{PK}")
                if tau > 0:
                    a(f"v_add_f32 v{A0}, v{A0}, v{T0}")
                    a(f"v_add_f32 v{A1}, v{A1}, v{T1}")
                    a(f"v_cvt_pk_bf16_f32 v{PK}, v{A0}, v{A1}")
                    a(f"v_lshlrev_b32 v{A0}, 16, v{PK}")
                    a(f"v_and_b32 v{A1}, 0xffff0000, v{PK}")
            a(f"v_mul_f32 v{A0}, v{A0}, v{V+ta}")
            a(f"v_mul_f32 v{A1}, v{A1}, v{V+tb}")
            a(f"v_cvt_pk_bf16_f32 v{o+pr}, v{A0}, v{A1}")
        a(f"s_mov_b32 s73, {c*XR_STRIDE}")
        a.vmem(f"buffer_store_dwordx2 v[{o}:{o+1}], v7, s[32:35], s73 offen")
    pend(a)

def gen_copy(a):
    a.comment("---------------- filter copy path: one channel per wave ----------------")
    make_srd(a, 20, 12, NB_ACT)
    make_srd(a, 24, 16, NB_HP, add=WS_HP)
    make_srd(a, 28, 16, NB_XR, add=WS_XR)
    a(f"s_sub_u32 s3, s2, {N_LN+N_KV}")
    a("s_lshl_b32 s3, s3, 2")
    a("v_lshrrev_b32 v1, 6, v0")
    a("v_add_u32 v1, s3, v1")
    a("v_and_b32 v2, 63, v0")
    a("v_lshlrev_b32 v3, 12, v1")
    a("v_lshl_add_u32 v3, v2, 4, v3")
    for i in range(4):
        a.vmem(f"buffer_load_dwordx4 v[{8+4*i}:{11+4*i}], v3, s[20:23], 0 offen offset:{1024*i}")
    a(f"s_movk_i32 s73, {HP_STRIDE}")
    a("v_mul_lo_u32 v4, v1, s73")
    a("v_lshl_add_u32 v5, v2, 4, v4")
    a(f"s_movk_i32 s73, {XR_STRIDE}")
    a("v_mul_lo_u32 v6, v1, s73")
    a("v_lshl_add_u32 v6, v2, 3, v6")
    for i in range(4):
        a(f"v_mov_b32 v{24+i}, 0")
    a("s_movk_i32 s73, 4096")
    a.vmem("buffer_store_dwordx2 v[24:25], v6, s[28:31], s73 offen")
    a("v_cmp_gt_u32 vcc, 2, v2")
    a("s_and_saveexec_b64 s[74:75], vcc")
    a.vmem("buffer_store_dwordx4 v[24:27], v5, s[24:27], 0 offen")
    a("s_movk_i32 s73, 4128")
    a.vmem("buffer_store_dwordx4 v[24:27], v5, s[24:27], s73 offen")
    a("s_mov_b64 exec, s[74:75]")
    a("s_waitcnt vmcnt(3)")
    for i in range(4):
        a.vmem(f"buffer_store_dwordx4 v[{8+4*i}:{11+4*i}], v5, s[24:27], 0 offen offset:{1024*i+32}")
    pend(a)

def gen_pf(a, pf_wd=True):
    a.comment("---------------- weight prefetch into the L2 of the XCD that will use them ----------------")
    a("s_load_dwordx4 s[40:43], s[0:1], 56")
    a("s_load_dwordx2 s[44:45], s[0:1], 72")
    a(f"s_sub_u32 s3, s2, {N_LN+N_KV+N_CP}")
    a("s_and_b32 s70, s3, 7")
    a("s_lshr_b32 s71, s3, 3")
    a("s_waitcnt lgkmcnt(0)")
    make_srd(a, 20, 40, NB_W)
    make_srd(a, 24, 42, NB_W)
    make_srd(a, 28, 44, NB_W)
    a("s_mul_i32 s72, s71, %d" % (18 * 9216))
    a("s_mul_i32 s73, s70, 1152")
    a("s_add_u32 s72, s72, s73")
    a("s_mov_b32 s74, 0x38e38e4")
    a("s_movk_i32 s75, 9216")
    for it in range(6):
        a(f"v_add_u32 v1, {256*it}, v0")
        a("v_mul_hi_u32 v2, v1, s74")
        a("v_mul_u32_u24 v3, 72, v2")
        a("v_sub_u32 v3, v1, v3")
        a("v_mul_lo_u32 v2, v2, s75")
        a("v_lshl_add_u32 v2, v3, 4, v2")
        a("v_add_u32 v2, s72, v2")
        if it == 5:
            a("v_cmp_gt_u32 vcc, 16, v0")
            a("s_and_saveexec_b64 s[76:77], vcc")
        a(f"buffer_load_dwordx4 v[{8+8*it}:{11+8*it}], v2, s[20:23], 0 offen")
        a(f"buffer_load_dwordx4 v[{12+8*it}:{15+8*it}], v2, s[24:27], 0 offen")
        if it == 5:
            a("s_mov_b64 exec, s[76:77]")
    a("s_getpc_b64 s[78:79]")
    a.label("L_pc_anchor")
    a("s_add_u32 s78, s78, gemm1_kernel-L_pc_anchor")
    a("s_addc_u32 s79, s79, 0")
    a("s_lshl_b32 s73, s71, 11")
    a("v_lshlrev_b32 v1, 3, v0")
    a("v_add_u32 v1, s73, v1")
    a("s_mov_b32 s73, L_final_kernel_exit-gemm1_kernel")
    a("v_cmp_gt_u32 vcc, s73, v1")
    a("s_and_saveexec_b64 s[76:77], vcc")
    a("s_cbranch_execz L_pc_skip")
    a("global_load_dwordx2 v[60:61], v1, s[78:79]")
    a.label("L_pc_skip")
    a("s_mov_b64 exec, s[76:77]")
    if pf_wd:
        a("s_lshr_b32 s72, s70, 1")
        a("s_mul_i32 s72, s72, 1327104")
        a("s_mul_i32 s73, s71, 41472")
        a("s_add_u32 s72, s72, s73")
        a("v_lshlrev_b32 v1, 4, v0")
        a("v_add_u32 v1, s72, v1")
        for it in range(11):
            a(f"s_mov_b32 s73, {4096*it}")
            if it == 10:
                a("v_cmp_gt_u32 vcc, 32, v0")
                a("s_and_saveexec_b64 s[76:77], vcc")
            a(f"buffer_load_dwordx4 v[{64+4*it}:{67+4*it}], v1, s[28:31], s73 offen")
    pend(a)

STAMP = [False]
def pend(a):
    if STAMP[0]:
        a("s_mov_b64 exec, -1")
        a("s_waitcnt vmcnt(0)")
        a("s_memtime s[92:93]")
        a("s_memrealtime s[86:87]")
        a("s_waitcnt lgkmcnt(0)")
        a("s_sub_u32 s92, s92, s90")
        make_srd(a, 80, 16, 1<<20, add=(60<<20))
        a("v_mov_b32 v4, s92")
        a("v_mov_b32 v5, s88")
        a("v_mov_b32 v6, s86")
        a("v_mov_b32 v7, 0")
        a("v_lshrrev_b32 v3, 6, v0")
        a("s_lshl_b32 s85, s2, 2")
        a("v_add_u32 v3, s85, v3")
        a("v_lshlrev_b32 v3, 4, v3")
        a("buffer_store_dwordx4 v[4:7], v3, s[80:83], 0 offen")
    a("s_endpgm")

def gen_prep(pf_wd=True, T=False):
    STAMP[0] = T
    a = Asm()
    a.raw(kernel_header("prep_kernel"))
    if T:
        a("s_memtime s[90:91]")
        a("s_memrealtime s[88:89]")
    tot = N_LN + N_KV + N_CP + N_PF
    a(f"s_cmp_ge_u32 s2, {tot}")
    a("s_cbranch_scc1 L_prep_exit")
    a("s_load_dwordx4 s[4:7], s[0:1], 0")
    a("s_load_dwordx4 s[8:11], s[0:1], 16")
    a("s_load_dwordx4 s[12:15], s[0:1], 32")
    a("s_load_dwordx2 s[16:17], s[0:1], 96")
    a("s_waitcnt lgkmcnt(0)")
    a(f"s_cmp_ge_u32 s2, {N_LN+N_KV+N_CP}")
    a("s_cbranch_scc1 L_prep_pf")
    a(f"s_cmp_ge_u32 s2, {N_LN}")
    a("s_cbranch_scc1 L_prep_kv")
    gen_ln(a)
    a.label("L_prep_kv"); a.vm = []; a.lg = []
    gen_kv(a)
    a.label("L_prep_pf"); a.vm = []; a.lg = []
    gen_pf(a, pf_wd)
    a.label("L_prep_exit")
    a("s_endpgm")
    return a.text(), kernel_desc("prep_kernel", 128, 96, 128), f"; @launch kernel=prep_kernel grid=({tot},1,1) block=(256,1,1) lds=0"
```

```python
from asmlib import *

STAGE = 36864
RING = 4
NST = 9
GEMM_LDS = STAGE * RING

CV_BASE = 3 * STAGE
CV_STRIDE = 12928
def conv_dma(a):
    a("s_lshl_b32 s42, s2, 2")
    a("s_add_u32 s42, s42, s17")
    a("s_lshl_b32 s43, s42, 12")
    a("s_add_u32 s64, s44, s43")
    a("s_addc_u32 s65, s45, 0")
    a("s_movk_i32 s66, 4096")
    a("s_mov_b32 s67, 0x00020000")
    a(f"s_mul_i32 s43, s42, {XR_STRIDE}")
    a(f"s_add_u32 s43, s43, {WS_XR}")
    a("s_add_u32 s68, s10, s43")
    a("s_addc_u32 s69, s11, 0")
    a(f"s_movk_i32 s70, {XR_STRIDE}")
    a("s_mov_b32 s71, 0x00020000")
    a(f"s_mul_i32 s72, s17, {CV_STRIDE}")
    a(f"s_add_u32 s72, s72, {CV_BASE}")
    a("v_lshlrev_b32 v160, 4, v2")
    a("v_subrev_u32 v161, 32, v160")
    a("v_subrev_u32 v162, 30, v160")
    for cp in range(2):
        for j in range(5):
            if j == 4:
                a("s_mov_b64 exec, 15")
            a(f"s_add_u32 m0, s72, {cp*4160 + j*1024}")
            if j == 0:
                a("s_nop 0")
                a.vmem(f"buffer_load_dwordx4 v{161+cp}, s[64:67], 0 offen lds", "CV")
            else:
                a(f"s_movk_i32 s43, {j*1024 - 32 + 2*cp}")
                a.vmem(f"buffer_load_dwordx4 v160, s[64:67], s43 offen lds", "CV")
            if j == 4:
                a("s_mov_b64 exec, -1")
    for j in range(5):
        if j == 4:
            a("s_mov_b64 exec, 0xffffffff")
        a(f"s_add_u32 m0, s72, {8320 + j*1024}")
        a(f"s_movk_i32 s43, {j*1024}")
        a.vmem(f"buffer_load_dwordx4 v160, s[68:71], s43 offen lds", "CV")
        if j == 4:
            a("s_mov_b64 exec, -1")
    a("v_mov_b32 v163, 0")
    a.vmem("buffer_load_short_d16 v163, off, s[64:67], 0", "CV")
    a("s_lshr_b32 s43, s42, 1")
    a("s_lshl_b32 s43, s43, 2")
    a("s_load_dword s73, s[46:47], s43")

def conv_compute(a, T=False, fillers=None, barriers=False):
    def st(k):
        if T:
            a(f's_memtime s[{80+2*k}:{81+2*k}]')
    st(0)
    make_srd(a, 76, 10, NB_ACT, add=WS_Y2T)
    a("v_and_b32 v164, 15, v2")
    a("v_lshrrev_b32 v165, 4, v2")
    a("v_add_u32 v166, 1, v164")
    a("v_and_b32 v167, 1, v166")
    a("v_sub_u32 v166, v166, v167")
    a("v_lshl_add_u32 v166, v165, 3, v166")
    a("v_lshlrev_b32 v166, 1, v166")
    a("v_mul_u32_u24 v167, 4160, v167")
    a("v_add_u32 v166, v166, v167")
    a("v_add_u32 v166, s72, v166")
    for k in range(1, 4):
        a(f"v_add_u32 v{166+k}, {1024*k}, v166")
    a("v_lshlrev_b32 v170, 5, v164")
    a("v_sub_u32 v170, 8800, v170")
    a("v_lshl_add_u32 v170, v165, 4, v170")
    a("v_add_u32 v170, s72, v170")
    a.wait_vm("CV")
    if barriers:
        a("s_barrier")
    st(1)
    a("v_mov_b32 v171, s72")
    a("s_mov_b64 exec, 1")
    a.lds("ds_write_b16 v171, v163 offset:4190")
    a("s_mov_b64 exec, -1")
    a.wait_all(vm=False)
    def fr(bs, k, n=4):
        b = (32 if bs == 0 else 96) + k
        return f"v[{b}:{b+n-1}]"
    def load(w):
        bs = w & 1
        for u in range(8):
            o = (512 * (u & 1) + 64 * w) // 4
            a.lds(f"ds_read2_b32 {fr(bs, 4*u, 2)}, v{166+(u>>1)} offset0:{o} offset1:{o+1}", f"w{w}")
            a.lds(f"ds_read2_b32 {fr(bs, 4*u+2, 2)}, v{166+(u>>1)} offset0:{o+2} offset1:{o+3}", f"w{w}")
        for e in range(8):
            a.lds(f"ds_read_b128 {fr(bs, 32+4*e)}, v170 offset:{2*(256*(7-e)+32*w)}", f"w{w}")
    load(0)
    for w in range(8):
        a.wait_all(vm=False)
        bs = w & 1
        mf = []
        for u in range(8):
            for i in range(u, 8):
                e = i - u
                c = "0" if (w == 0 and u == 0) else f"a[{4*i}:{4*i+3}]"
                mf.append(f"v_mfma_f32_16x16x32_bf16 a[{4*i}:{4*i+3}], {fr(bs,4*u)}, {fr(bs,32+4*e)}, {c}")
        if w < 7:
            sub = Asm(); sub.lg = a.lg
            keep = a.lines; a.lines = []
            load(w + 1)
            lds = a.lines; a.lines = keep
        else:
            a("v_mul_u32_u24 v171, 24, v165")
            a("v_sub_u32 v171, v170, v171")
            keep = a.lines; a.lines = []
            for i in range(8):
                a.lds(f"ds_read_b64 v[{32+2*i}:{33+2*i}], v171 offset:{3608-512*i}", "kv")
            lds = a.lines; a.lines = keep
        for k, ins in enumerate(mf):
            a(ins)
            if k < len(lds):
                a.lines.append(lds[k])
            if fillers and k % 3 == 2:
                fillers.pop(0)()
        assert len(lds) <= len(mf)
        if barriers and (w & 1) == 1:
            a("s_barrier")
    a.wait_all(vm=False)
    st(2)
    a("s_and_b32 s43, s42, 1")
    a("s_lshl_b32 s74, s73, 16")
    a("s_and_b32 s73, s73, 0xffff0000")
    a("s_cmp_eq_u32 s43, 1")
    a("s_cselect_b32 s73, s73, s74")
    a("s_lshl_b32 s74, s42, 12")
    a("v_lshlrev_b32 v171, 5, v164")
    a("v_lshl_add_u32 v171, v165, 3, v171")
    a("v_add_u32 v171, s74, v171")
    a("s_nop 4")
    T = 8
    for i in range(8):
        kv = 32 + 2*i
        for r in range(4):
            a(f"v_accvgpr_read_b32 v{T+12+r}, a{4*i+r}")
        a(f"v_and_b32 v{T}, 0xffff0000, v{kv+1}")
        a(f"v_lshlrev_b32 v{T+1}, 16, v{kv+1}")
        a(f"v_and_b32 v{T+2}, 0xffff0000, v{kv}")
        a(f"v_lshlrev_b32 v{T+3}, 16, v{kv}")
        for r in range(4):
            a(f"v_mul_f32 v{T+r}, s73, v{T+r}")
        a(f"v_cvt_pk_bf16_f32 v{T+4}, v{T}, v{T+1}")
        a(f"v_cvt_pk_bf16_f32 v{T+5}, v{T+2}, v{T+3}")
        a(f"v_cvt_pk_bf16_f32 v{T+6}, v{T+12}, v{T+13}")
        a(f"v_cvt_pk_bf16_f32 v{T+7}, v{T+14}, v{T+15}")
        o = T + 8 + 2 * (i & 1)
        for hh in range(2):
            a(f"v_lshlrev_b32 v{T}, 16, v{T+4+hh}")
            a(f"v_and_b32 v{T+1}, 0xffff0000, v{T+4+hh}")
            a(f"v_lshlrev_b32 v{T+2}, 16, v{T+6+hh}")
            a(f"v_and_b32 v{T+3}, 0xffff0000, v{T+6+hh}")
            a(f"v_add_f32 v{T}, v{T}, v{T+2}")
            a(f"v_add_f32 v{T+1}, v{T+1}, v{T+3}")
            a(f"v_cvt_pk_bf16_f32 v{o+hh}, v{T}, v{T+1}")
        a(f"buffer_store_dwordx2 v[{o}:{o+1}], v171, s[76:79], 0 offen offset:{512*i}")

def gen_gemm(which, abl=(), PA=None, PB=None):
    g1 = (which == 1)
    RING = 4 if g1 else 3
    AHEAD = RING - 1
    name = "gemm1_kernel" if g1 else "gemm2_kernel"
    RT = 4 if g1 else 2
    NM = 2 if g1 else 1
    KS = 2 if g1 else 4
    CT = 9
    PA = PA or (3 if g1 else 11)
    PB = PB or (2 if g1 else 6)
    VPG = 3 if g1 else 1
    NSTEP = NST * KS
    FULLPRO = (not g1) or ('F' in abl)
    a = Asm()
    a.raw(kernel_header(name))
    a("s_cmp_ge_u32 s2, 256")
    a(f"s_cbranch_scc1 L_{name}_exit")
    if "T" in abl:
        a("s_memtime s[50:51]")
        a("s_memrealtime s[60:61]")
    a("s_load_dwordx4 s[4:7], s[0:1], 56")
    a("s_load_dwordx2 s[8:9], s[0:1], 72")
    a("s_load_dwordx2 s[10:11], s[0:1], 96")
    if not g1:
        a("s_load_dwordx4 s[44:47], s[0:1], 32")
    a("s_and_b32 s12, s2, 7")
    a("s_lshr_b32 s13, s2, 3")
    if g1:
        a("s_and_b32 s14, s13, 3")
        a("s_lshl_b32 s15, s12, 2")
        a("s_add_u32 s14, s14, s15")
        a("s_lshr_b32 s15, s13, 2")
    else:
        a("s_and_b32 s14, s13, 3")
        a("s_and_b32 s15, s12, 1")
        a("s_lshl_b32 s15, s15, 3")
        a("s_lshr_b32 s16, s13, 2")
        a("s_add_u32 s15, s15, s16")
        a("s_lshr_b32 s16, s12, 1")
    a("v_lshrrev_b32 v1, 6, v0")
    a("v_and_b32 v2, 63, v0")
    a("v_readfirstlane_b32 s17, v1")
    VD = 8
    rowbytes = 9216 if g1 else 1152
    a("s_mul_i32 s18, s14, 288")
    if not g1:
        a("s_mul_i32 s19, s16, %d" % (1152 * 1152))
        a("s_add_u32 s18, s18, s19")
    if g1:
        a("s_and_b32 s19, s17, 1")
    else:
        a("s_mov_b32 s19, s17")
    a("s_mul_i32 s19, s19, 576")
    a("s_movk_i32 s32, 3641")
    a("s_movk_i32 s33, 18")
    a(f"s_mov_b32 s34, {rowbytes}")
    for j in range(9):
        a(f"v_add_u32 v3, s19, v2")
        if j:
            a(f"v_add_u32 v3, {64*j}, v3")
        a("v_mul_lo_u32 v4, v3, s32")
        a("v_lshrrev_b32 v4, 16, v4")
        a("v_mul_lo_u32 v5, v4, s33")
        a("v_sub_u32 v5, v3, v5")
        if g1:
            a("v_and_b32 v6, 0xe3, v4")
            a("v_bfe_u32 v7, v4, 2, 2")
            a("v_lshl_add_u32 v6, v7, 3, v6")
            a("v_bfe_u32 v7, v4, 4, 1")
            a("v_lshl_add_u32 v4, v7, 2, v6")
        a("v_mul_lo_u32 v4, v4, s34")
        a("v_lshl_add_u32 v4, v5, 4, v4")
        a(f"v_add_u32 v{VD+j}, s18, v4")
    a("s_mul_i32 s35, s17, 9216")
    VA = 17
    if g1:
        a("s_lshl_b32 s36, s15, 4")
        a("s_lshl_b32 s37, s17, 2")
        a("s_add_u32 s36, s36, s37")
        a("s_mul_i32 s36, s36, 18432")
        astride = 18432
    else:
        a("s_lshl_b32 s36, s15, 3")
        a("s_lshl_b32 s37, s17, 1")
        a("s_add_u32 s36, s36, s37")
        a("s_mul_i32 s36, s36, 147456")
        a("s_mul_i32 s37, s16, 36864")
        a("s_add_u32 s36, s36, s37")
        astride = 147456
    a("v_lshlrev_b32 v3, 4, v2")
    a(f"v_add_u32 v{VA}, s36, v3")
    for rt in range(1, RT):
        a(f"v_add_u32 v{VA+rt}, {astride*rt}, v{VA}")
    VB = 21
    a("v_lshrrev_b32 v3, 4, v2")
    a("v_bfe_u32 v4, v2, 2, 2")
    a("v_lshl_add_u32 v3, v3, 2, v4")
    a("s_movk_i32 s37, 288")
    a("v_mul_lo_u32 v3, v3, s37")
    a("v_and_b32 v4, 3, v2")
    a(f"v_lshl_add_u32 v{VB}, v4, 3, v3")
    for s in range(1, RING):
        a(f"v_add_u32 v{VB+s}, {STAGE*s}, v{VB}")
    a("s_waitcnt lgkmcnt(0)")
    if not g1:
        a("s_cmp_ge_u32 s17, 4")
        a(f"s_cbranch_scc1 L_{name}_conv")
    if g1:
        a("s_cmp_ge_u32 s17, 2")
        a("s_cselect_b32 s20, s6, s4")
        a("s_cselect_b32 s21, s7, s5")
        a(f"s_mov_b32 s22, {NB_W}")
        a("s_mov_b32 s23, 0x00020000")
        make_srd(a, 24, 10, NB_ACT, add=WS_XNF)
        make_srd(a, 28, 10, NB_H, add=WS_H)
    else:
        make_srd(a, 20, 8, NB_W)
        make_srd(a, 24, 10, NB_H, add=WS_H)
        make_srd(a, 28, 10, NB_P, add=WS_P)
    if g1:
        make_srd(a, 88, 8, NB_W)
        a("s_lshr_b32 s92, s12, 1")
        a("s_mul_i32 s92, s92, 1327104")
        a("s_mul_i32 s93, s13, 41472")
        a("s_add_u32 s92, s92, s93")
        a("s_mul_i32 s93, s17, 10368")
        a("s_add_u32 s92, s92, s93")
        a("v_lshlrev_b32 v25, 4, v2")
        a("v_add_u32 v25, s92, v25")
    AF = 28
    NAF = (PA + 1) * RT * 4
    BF = AF + NAF
    NBF = (PB + 1) * NM * 4
    VACC = BF + NBF
    ntile = RT * CT * NM
    def acc(rt, ct, m):
        idx = (ct * NM + m) * RT + rt
        if idx < 64:
            return ("a", 4 * idx)
        return ("v", VACC + 4 * (idx - 64))
    def accs(rt, ct, m):
        k, b = acc(rt, ct, m)
        return f"{k}[{b}:{b+3}]"
    nvacc = max(0, ntile - 64) * 4
    VT = VACC + nvacc
    stage_stride = (64 * 9216) if g1 else (128 * 1152)

    def emit_dma(st, j):
        slot = st % RING
        a(f"s_add_u32 m0, s35, {slot*STAGE + j*1024}")
        a(f"s_mov_b32 s38, {st*stage_stride}")
        a.vmem(f"buffer_load_dwordx4 v{VD+j}, s[20:23], s38 offen lds", f"D{st}")
    def emit_aload(step, rt):
        b = AF + (step % (PA + 1)) * RT * 4 + rt * 4
        a(f"s_mov_b32 s39, {step*1024}")
        a.vmem(f"buffer_load_dwordx4 v[{b}:{b+3}], v{VA+rt}, s[24:27], s39 offen", f"A{step}")
    def emit_pf(i, _):
        a(f"s_movk_i32 s93, {i*1024}")
        a.vmem(f"buffer_load_dwordx4 v[{VT+20}:{VT+23}], v25, s[88:91], s93 offen", "PF")

    for j in range(9):
        emit_dma(0, j)
    for rt in range(RT):
        emit_aload(0, rt)
    queue = []
    def qa(t):
        return [("A", t, rt) for rt in range(RT)]
    def qd(s):
        return [("D", s, j) for j in range(9)]
    na1 = KS
    for t in range(1, min(PA, na1)):
        queue += qa(t)
    queue += qd(1)
    for t in range(max(1, min(PA, na1)), min(PA, 2*KS)):
        queue += qa(t)
    if AHEAD >= 3:
        queue += qd(2)
    for t in range(max(1, min(PA, 2*KS)), PA):
        queue += qa(t)
    if (not g1) and FULLPRO:
        for x in queue:
            (emit_aload if x[0] == "A" else emit_dma)(x[1], x[2])
        queue = []
    NG = NSTEP * CT
    def b_reads(G):
        step, ct = divmod(G, CT)
        st, ks = divmod(step, KS)
        slot = st % RING
        buf = BF + (G % (PB + 1)) * NM * 4
        out = []
        for m in range(NM):
            for half in range(2):
                off = m * 18432 + ks * 9216 + half * 4608 + ct * 32
                out.append(f"ds_read_b64_tr_b16 v[{buf+4*m+2*half}:{buf+4*m+2*half+1}], v{VB+slot} offset:{off}")
        return out
    a.wait_vm("D0")
    a("s_barrier")
    if "T" in abl:
        a("s_memtime s[52:53]")
        a("s_waitcnt lgkmcnt(0)")
    for G in range(PB):
        for ins in b_reads(G):
            a.lds(ins, f"B{G}")
    GPS = KS * CT
    BAR_AHEAD = PB + 1
    issued = set()
    for G in range(NG):
        step, ct = divmod(G, CT)
        st = step // KS
        fill = []
        if ct == 0:
            while any(x[0] == "A" and x[1] == step for x in queue):
                x = queue.pop(0)
                {"A": emit_aload, "D": emit_dma, "P": emit_pf}[x[0]](x[1], x[2])
            a.wait_vm(f"A{step}")
            if step + PA < NSTEP:
                queue += qa(step + PA)
        nxt = st + 1
        if nxt < NST and G == nxt * GPS - BAR_AHEAD:
            while any(x[0] == "D" and x[1] == nxt for x in queue):
                x = queue.pop(0)
                {"A": emit_aload, "D": emit_dma, "P": emit_pf}[x[0]](x[1], x[2])
            a.wait_vm(f"D{nxt}")
            a("s_barrier")
            if st + AHEAD < NST:
                queue += qd(st + AHEAD)
            if g1 and st < 6:
                queue += [("P", 2*st, 0), ("P", 2*st+1, 0)][: (2 if st < 5 else 1)]
        if G + PB < NG:
            for ins in b_reads(G + PB):
                fill.append(("l", ins, f"B{G+PB}"))
        for _ in range(VPG):
            if queue:
                fill.append(queue.pop(0))
        a.wait_lg(f"B{G}")
        buf = BF + (G % (PB + 1)) * NM * 4
        abuf = AF + (step % (PA + 1)) * RT * 4
        mf = []
        for m in range(NM):
            for rt in range(RT):
                c = accs(rt, ct, m) if step > 0 else "0"
                mf.append(f"v_mfma_f32_16x16x32_bf16 {accs(rt,ct,m)}, v[{buf+4*m}:{buf+4*m+3}], v[{abuf+4*rt}:{abuf+4*rt+3}], {c}")
        per = -(-len(fill) // len(mf)) if fill else 0
        fi = 0
        for ins in mf:
            a(ins)
            for _ in range(per):
                if fi >= len(fill):
                    break
                f = fill[fi]; fi += 1
                if f[0] == "l":
                    a.lds(f[1], f[2])
                elif f[0] == "A":
                    emit_aload(f[1], f[2])
                elif f[0] == "D":
                    emit_dma(f[1], f[2])
                elif f[0] == "P":
                    emit_pf(f[1], f[2])
    assert not queue
    if "T" in abl:
        a("s_memtime s[54:55]")
        a("s_waitcnt lgkmcnt(0)")
    a("s_nop 7")
    a("s_nop 7")
    def stamp_end():
        if "T" not in abl: return
        a("s_memtime s[56:57]")
        a("s_waitcnt vmcnt(0) lgkmcnt(0)")
        a("s_memtime s[58:59]")
        a("s_memrealtime s[62:63]")
        a("s_waitcnt lgkmcnt(0)")
        for x in (52, 54, 56, 58):
            a(f"s_sub_u32 s{x}, s{x}, s50")
        a("s_sub_u32 s62, s62, s60")
        make_srd(a, 64, 10, 1<<20, add=(56<<20) + (which<<20))
        for i, x in enumerate((52, 54, 56, 58, 62, 80, 82, 84)):
            a(f"v_mov_b32 v{4+i}, s{x}")
        a("s_lshl_b32 s70, s2, 2")
        a("s_add_u32 s70, s70, s17")
        a("s_lshl_b32 s70, s70, 5")
        a("v_mov_b32 v3, s70")
        a("buffer_store_dwordx4 v[4:7], v3, s[64:67], 0 offen")
        a("buffer_store_dwordx4 v[8:11], v3, s[64:67], 0 offen offset:16")
    def rd(dst, rt, ct, m):
        k, b = acc(rt, ct, m)
        if k == "a":
            for r in range(4):
                a(f"v_accvgpr_read_b32 v{dst+r}, a{b+r}")
            return dst
        return b
    if g1:
        a("s_lshl_b32 s36, s15, 4")
        a("s_lshl_b32 s37, s17, 2")
        a("s_add_u32 s36, s36, s37")
        a("s_mul_i32 s36, s36, 147456")
        a("s_mul_i32 s37, s14, 9")
        a("s_lshr_b32 s40, s37, 1")
        a("s_lshl_b32 s40, s40, 10")
        a("s_add_u32 s36, s36, s40")
        a("v_lshlrev_b32 v3, 4, v2")
        a("v_add_u32 v3, s36, v3")
        a("s_and_b32 s37, s37, 1")
        a("s_cmp_eq_u32 s37, 1")
        a(f"s_cbranch_scc1 L_{name}_odd")
        for par in range(2):
            if par == 1:
                a.label(f"L_{name}_odd")
            ob = 0
            for rt in range(RT):
                for ct in range(CT):
                    T = par + ct
                    half = T & 1
                    OB = VT + 16 + 4 * ob
                    o = OB + 2 * half
                    g = rd(VT, rt, ct, 0)
                    u = rd(VT + 4, rt, ct, 1)
                    a(f"v_cvt_pk_bf16_f32 v{VT+8}, v{g}, v{g+1}")
                    a(f"v_cvt_pk_bf16_f32 v{VT+9}, v{g+2}, v{g+3}")
                    a(f"v_cvt_pk_bf16_f32 v{VT+10}, v{u}, v{u+1}")
                    a(f"v_cvt_pk_bf16_f32 v{VT+11}, v{u+2}, v{u+3}")
                    for hh in range(2):
                        a(f"v_lshlrev_b32 v{VT}, 16, v{VT+8+hh}")
                        a(f"v_and_b32 v{VT+1}, 0xffff0000, v{VT+8+hh}")
                        a(f"v_lshlrev_b32 v{VT+2}, 16, v{VT+10+hh}")
                        a(f"v_and_b32 v{VT+3}, 0xffff0000, v{VT+10+hh}")
                        a(f"v_pk_mul_f32 v[{VT}:{VT+1}], v[{VT}:{VT+1}], v[{VT+2}:{VT+3}]")
                        a(f"v_cvt_pk_bf16_f32 v{o+hh}, v{VT}, v{VT+1}")
                    kb = T >> 1
                    a(f"s_mov_b32 s41, {rt*147456 + kb*1024}")
                    if half == 1 and ct > 0:
                        a.vmem(f"buffer_store_dwordx4 v[{OB}:{OB+3}], v3, s[28:31], s41 offen")
                        ob ^= 1
                    elif half == 1 and ct == 0:
                        a.vmem(f"buffer_store_dwordx2 v[{OB+2}:{OB+3}], v3, s[28:31], s41 offen offset:8")
                        ob ^= 1
                    elif half == 0 and ct == CT - 1:
                        a.vmem(f"buffer_store_dwordx2 v[{OB}:{OB+1}], v3, s[28:31], s41 offen")
                        ob ^= 1
            stamp_end()
            a("s_endpgm")
    else:
        a("s_lshl_b32 s36, s16, 7")
        a("s_lshl_b32 s37, s15, 3")
        a("s_add_u32 s36, s36, s37")
        a("s_lshl_b32 s37, s17, 1")
        a("s_add_u32 s36, s36, s37")
        a("s_mul_i32 s36, s36, 36864")
        a("s_mul_i32 s37, s14, 9216")
        a("s_add_u32 s36, s36, s37")
        a("v_lshlrev_b32 v3, 4, v2")
        a("v_add_u32 v3, s36, v3")
        for rt in range(RT):
            for ct in range(CT):
                k, b = acc(rt, ct, 0)
                off = rt * 36864 + ct * 1024
                a(f"s_mov_b32 s41, {off}")
                a.vmem(f"buffer_store_dwordx4 {k}[{b}:{b+3}], v3, s[28:31], s41 offen")
        stamp_end()
        a("s_endpgm")
        a.label(f"L_{name}_conv")
        a.vm = []; a.lg = []
        a("s_cmp_ge_u32 s2, 144")
        a(f"s_cbranch_scc1 L_{name}_exit")
        a("s_sub_u32 s17, s17, 4")
        a("s_barrier")
        conv_dma(a)
        a("s_barrier")
        conv_compute(a, False, None, barriers=True)
        a("s_endpgm")
    a.label(f"L_{name}_exit")
    a("s_endpgm")
    nv = VT + 24
    nv = (nv + 3) // 4 * 4
    nacc = min(ntile, 64) * 4
    lds = STAGE * RING
    blk = 256
    if not g1:
        assert nv <= 176
        nv, nacc, lds, blk = 176, 80, 163840, 512
    return a.text(), kernel_desc(name, nv + nacc, 96, nv), f"; @launch kernel={name} grid=(256,1,1) block=({blk},1,1) lds={lds}"
```

```python
import sys
from build import build
import gen_prep3, gen_gemm7, gen_final
abl = tuple(sys.argv[2]) if len(sys.argv) > 2 else ()
parts = [gen_prep3.gen_prep(T=('T' in abl), pf_wd=False), gen_gemm7.gen_gemm(1, abl), gen_gemm7.gen_gemm(2, abl), gen_final.gen_final()]
build(parts, sys.argv[1])
```

```python
import sys
from build import build
from asmlib import *
import gen_prep3, gen_gemm7, gen_final
def nop(name):
    return (kernel_header(name) + "    s_endpgm\n", kernel_desc(name, 8, 16, 8), f"; @launch kernel={name} grid=(1,1,1) block=(64,1,1) lds=0")
parts = [gen_prep3.gen_prep(pf_wd=False), gen_gemm7.gen_gemm(1), gen_gemm7.gen_gemm(2), gen_final.gen_final(), nop("nopa_kernel"), nop("nopb_kernel")]
build(parts, "v7n.s")
```

```python
from asmlib import *

def gen_final(TPW=3):
    name = "final_kernel"
    a = Asm()
    a.raw(kernel_header(name))
    NJ = 36 // TPW
    NWAVE = 128 * NJ
    NWG = NWAVE // 4
    a(f"s_cmp_ge_u32 s2, {NWG}")
    a(f"s_cbranch_scc1 L_{name}_exit")
    a("s_load_dwordx2 s[4:5], s[0:1], 0")
    a("s_load_dwordx2 s[6:7], s[0:1], 80")
    a("s_load_dwordx2 s[10:11], s[0:1], 96")
    a("v_lshrrev_b32 v1, 6, v0")
    a("v_and_b32 v2, 63, v0")
    a("v_readfirstlane_b32 s12, v1")
    a("s_lshl_b32 s13, s2, 2")
    a("s_nop 1")
    a("s_add_u32 s13, s13, s12")
    magic = -(-(1 << 32) // NJ)
    a(f"s_mov_b32 s14, {magic}")
    a("s_mul_hi_u32 s15, s13, s14")
    a(f"s_mul_i32 s16, s15, {NJ}")
    a("s_sub_u32 s16, s13, s16")
    a(f"s_mul_i32 s16, s16, {TPW}")
    a("s_mul_i32 s17, s15, 36")
    a("s_add_u32 s17, s17, s16")
    a("s_lshl_b32 s17, s17, 10")
    a("v_lshlrev_b32 v3, 4, v2")
    a("v_add_u32 v3, s17, v3")
    a("v_and_b32 v4, 15, v2")
    a("s_lshl_b32 s17, s15, 4")
    a("v_add_u32 v4, s17, v4")
    a("s_movk_i32 s18, 1152")
    a("v_mul_lo_u32 v4, v4, s18")
    a("v_lshrrev_b32 v5, 4, v2")
    a("v_lshl_add_u32 v4, v5, 3, v4")
    a("s_lshl_b32 s17, s16, 5")
    a("v_add_u32 v4, s17, v4")
    a("s_lshl_b32 s17, s16, 16")
    a("s_lshl_b32 s18, s15, 5")
    a("s_add_u32 s17, s17, s18")
    a("v_lshlrev_b32 v5, 14, v5")
    a("v_and_b32 v6, 15, v2")
    a("v_lshl_add_u32 v5, v6, 1, v5")
    a("v_add_u32 v5, s17, v5")
    a("s_waitcnt lgkmcnt(0)")
    make_srd(a, 20, 4, NB_ACT)
    make_srd(a, 24, 6, NB_ACT)
    make_srd(a, 28, 10, NB_ACT, add=WS_XNR)
    make_srd(a, 32, 10, NB_ACT, add=WS_Y2T)
    make_srd(a, 36, 10, NB_P, add=WS_P)
    R = 16
    for t in range(TPW):
        B = R + 24 * t
        for sp in range(4):
            a(f"s_mov_b32 s18, {sp*4718592}")
            a.vmem(f"buffer_load_dwordx4 v[{B+4*sp}:{B+4*sp+3}], v3, s[36:39], s18 offen offset:{1024*t}", f"t{t}")
        a.vmem(f"buffer_load_dwordx2 v[{B+16}:{B+17}], v4, s[20:23], 0 offen offset:{32*t}", f"t{t}")
        a.vmem(f"buffer_load_dwordx2 v[{B+18}:{B+19}], v4, s[28:31], 0 offen offset:{32*t}", f"t{t}")
        for r in range(4):
            a(f"v_mov_b32 v{B+20+r}, 0")
        for r in range(4):
            a(f"s_mov_b32 s18, {65536*t + 4096*r}")
            a.vmem(f"buffer_load_short_d16_hi v{B+20+r}, v5, s[32:35], s18 offen", f"t{t}")
    for t in range(TPW):
        B = R + 24 * t
        a.wait_vm(f"t{t}")
        for r in range(4):
            a(f"v_add_f32 v{B+r}, v{B+r}, v{B+4+r}")
            a(f"v_add_f32 v{B+8+r}, v{B+8+r}, v{B+12+r}")
            a(f"v_add_f32 v{B+r}, v{B+r}, v{B+8+r}")
        a(f"v_cvt_pk_bf16_f32 v{B+4}, v{B}, v{B+1}")
        a(f"v_cvt_pk_bf16_f32 v{B+5}, v{B+2}, v{B+3}")
        for hh in range(2):
            a(f"v_lshlrev_b32 v8, 16, v{B+18+hh}")
            a(f"v_and_b32 v9, 0xffff0000, v{B+18+hh}")
            a(f"v_mul_f32 v8, v8, v{B+20+2*hh}")
            a(f"v_mul_f32 v9, v9, v{B+21+2*hh}")
            a("v_cvt_pk_bf16_f32 v12, v8, v9")
            a("v_lshlrev_b32 v8, 16, v12")
            a("v_and_b32 v9, 0xffff0000, v12")
            a(f"v_lshlrev_b32 v10, 16, v{B+16+hh}")
            a(f"v_and_b32 v11, 0xffff0000, v{B+16+hh}")
            a("v_add_f32 v8, v8, v10")
            a("v_add_f32 v9, v9, v11")
            a("v_cvt_pk_bf16_f32 v12, v8, v9")
            a("v_lshlrev_b32 v8, 16, v12")
            a("v_and_b32 v9, 0xffff0000, v12")
            a(f"v_lshlrev_b32 v10, 16, v{B+4+hh}")
            a(f"v_and_b32 v11, 0xffff0000, v{B+4+hh}")
            a("v_add_f32 v8, v8, v10")
            a("v_add_f32 v9, v9, v11")
            a(f"v_cvt_pk_bf16_f32 v{B+6+hh}, v8, v9")
        a.vmem(f"buffer_store_dwordx2 v[{B+6}:{B+7}], v4, s[24:27], 0 offen offset:{32*t}", "st")
    a.label(f"L_{name}_exit")
    a("s_endpgm")
    nv = (R + 24 * TPW + 3) // 4 * 4
    for w in range(NWAVE + 40):
        assert (w * magic) >> 32 == w // NJ
    return a.text(), kernel_desc(name, nv, 48, nv), f"; @launch kernel={name} grid=({NWG},1,1) block=(256,1,1) lds=0"
```

```python
from asmlib import *

STAGE = 36864
RING = 4
NST = 9
GEMM_LDS = STAGE * RING

CV_BASE = 3 * STAGE
CV_STRIDE = 12928
def conv_dma(a):
    a("s_lshl_b32 s42, s2, 2")
    a("s_add_u32 s42, s42, s17")
    a("s_lshl_b32 s43, s42, 12")
    a("s_add_u32 s64, s44, s43")
    a("s_addc_u32 s65, s45, 0")
    a("s_movk_i32 s66, 4096")
    a("s_mov_b32 s67, 0x00020000")
    a(f"s_mul_i32 s43, s42, {XR_STRIDE}")
    a(f"s_add_u32 s43, s43, {WS_XR}")
    a("s_add_u32 s68, s10, s43")
    a("s_addc_u32 s69, s11, 0")
    a(f"s_movk_i32 s70, {XR_STRIDE}")
    a("s_mov_b32 s71, 0x00020000")
    a(f"s_mul_i32 s72, s17, {CV_STRIDE}")
    a(f"s_add_u32 s72, s72, {CV_BASE}")
    a("v_lshlrev_b32 v160, 4, v2")
    a("v_subrev_u32 v161, 32, v160")
    a("v_subrev_u32 v162, 30, v160")
    for cp in range(2):
        for j in range(5):
            if j == 4:
                a("s_mov_b64 exec, 15")
            a(f"s_add_u32 m0, s72, {cp*4160 + j*1024}")
            if j == 0:
                a("s_nop 0")
                a.vmem(f"buffer_load_dwordx4 v{161+cp}, s[64:67], 0 offen lds", "CV")
            else:
                a(f"s_movk_i32 s43, {j*1024 - 32 + 2*cp}")
                a.vmem(f"buffer_load_dwordx4 v160, s[64:67], s43 offen lds", "CV")
            if j == 4:
                a("s_mov_b64 exec, -1")
    for j in range(5):
        if j == 4:
            a("s_mov_b64 exec, 0xffffffff")
        a(f"s_add_u32 m0, s72, {8320 + j*1024}")
        a(f"s_movk_i32 s43, {j*1024}")
        a.vmem(f"buffer_load_dwordx4 v160, s[68:71], s43 offen lds", "CV")
        if j == 4:
            a("s_mov_b64 exec, -1")
    a("v_mov_b32 v163, 0")
    a.vmem("buffer_load_short_d16 v163, off, s[64:67], 0", "CV")
    a("s_lshr_b32 s43, s42, 1")
    a("s_lshl_b32 s43, s43, 2")
    a("s_load_dword s73, s[46:47], s43")

def conv_compute(a, T=False, fillers=None, barriers=False):
    def st(k):
        if T:
            a(f's_memtime s[{80+2*k}:{81+2*k}]')
    st(0)
    make_srd(a, 76, 10, NB_ACT, add=WS_Y2T)
    a("v_and_b32 v164, 15, v2")
    a("v_lshrrev_b32 v165, 4, v2")
    a("v_add_u32 v166, 1, v164")
    a("v_and_b32 v167, 1, v166")
    a("v_sub_u32 v166, v166, v167")
    a("v_lshl_add_u32 v166, v165, 3, v166")
    a("v_lshlrev_b32 v166, 1, v166")
    a("v_mul_u32_u24 v167, 4160, v167")
    a("v_add_u32 v166, v166, v167")
    a("v_add_u32 v166, s72, v166")
    for k in range(1, 4):
        a(f"v_add_u32 v{166+k}, {1024*k}, v166")
    a("v_lshlrev_b32 v170, 5, v164")
    a("v_sub_u32 v170, 8800, v170")
    a("v_lshl_add_u32 v170, v165, 4, v170")
    a("v_add_u32 v170, s72, v170")
    a.wait_vm("CV")
    if barriers:
        a("s_barrier")
    st(1)
    a("v_mov_b32 v171, s72")
    a("s_mov_b64 exec, 1")
    a.lds("ds_write_b16 v171, v163 offset:4190")
    a("s_mov_b64 exec, -1")
    a.wait_all(vm=False)
    def fr(bs, k, n=4):
        b = (32 if bs == 0 else 96) + k
        return f"v[{b}:{b+n-1}]"
    def load(w):
        bs = w & 1
        for u in range(8):
            o = (512 * (u & 1) + 64 * w) // 4
            a.lds(f"ds_read2_b32 {fr(bs, 4*u, 2)}, v{166+(u>>1)} offset0:{o} offset1:{o+1}", f"w{w}")
            a.lds(f"ds_read2_b32 {fr(bs, 4*u+2, 2)}, v{166+(u>>1)} offset0:{o+2} offset1:{o+3}", f"w{w}")
        for e in range(8):
            a.lds(f"ds_read_b128 {fr(bs, 32+4*e)}, v170 offset:{2*(256*(7-e)+32*w)}", f"w{w}")
    load(0)
    for w in range(8):
        a.wait_all(vm=False)
        bs = w & 1
        mf = []
        for u in range(8):
            for i in range(u, 8):
                e = i - u
                c = "0" if (w == 0 and u == 0) else f"a[{4*i}:{4*i+3}]"
                mf.append(f"v_mfma_f32_16x16x32_bf16 a[{4*i}:{4*i+3}], {fr(bs,4*u)}, {fr(bs,32+4*e)}, {c}")
        if w < 7:
            sub = Asm(); sub.lg = a.lg
            keep = a.lines; a.lines = []
            load(w + 1)
            lds = a.lines; a.lines = keep
        else:
            a("v_mul_u32_u24 v171, 24, v165")
            a("v_sub_u32 v171, v170, v171")
            keep = a.lines; a.lines = []
            for i in range(8):
                a.lds(f"ds_read_b64 v[{32+2*i}:{33+2*i}], v171 offset:{3608-512*i}", "kv")
            lds = a.lines; a.lines = keep
        for k, ins in enumerate(mf):
            a(ins)
            if k < len(lds):
                a.lines.append(lds[k])
            if fillers and k % 3 == 2:
                fillers.pop(0)()
        assert len(lds) <= len(mf)
        if barriers and (w & 1) == 1:
            a("s_barrier")
    a.wait_all(vm=False)
    st(2)
    a("s_and_b32 s43, s42, 1")
    a("s_lshl_b32 s74, s73, 16")
    a("s_and_b32 s73, s73, 0xffff0000")
    a("s_cmp_eq_u32 s43, 1")
    a("s_cselect_b32 s73, s73, s74")
    a("s_lshl_b32 s74, s42, 12")
    a("v_lshlrev_b32 v171, 5, v164")
    a("v_lshl_add_u32 v171, v165, 3, v171")
    a("v_add_u32 v171, s74, v171")
    a("s_nop 4")
    T = 8
    for i in range(8):
        kv = 32 + 2*i
        for r in range(4):
            a(f"v_accvgpr_read_b32 v{T+12+r}, a{4*i+r}")
        a(f"v_and_b32 v{T}, 0xffff0000, v{kv+1}")
        a(f"v_lshlrev_b32 v{T+1}, 16, v{kv+1}")
        a(f"v_and_b32 v{T+2}, 0xffff0000, v{kv}")
        a(f"v_lshlrev_b32 v{T+3}, 16, v{kv}")
        for r in range(4):
            a(f"v_mul_f32 v{T+r}, s73, v{T+r}")
        a(f"v_cvt_pk_bf16_f32 v{T+4}, v{T}, v{T+1}")
        a(f"v_cvt_pk_bf16_f32 v{T+5}, v{T+2}, v{T+3}")
        a(f"v_cvt_pk_bf16_f32 v{T+6}, v{T+12}, v{T+13}")
        a(f"v_cvt_pk_bf16_f32 v{T+7}, v{T+14}, v{T+15}")
        o = T + 8 + 2 * (i & 1)
        for hh in range(2):
            a(f"v_lshlrev_b32 v{T}, 16, v{T+4+hh}")
            a(f"v_and_b32 v{T+1}, 0xffff0000, v{T+4+hh}")
            a(f"v_lshlrev_b32 v{T+2}, 16, v{T+6+hh}")
            a(f"v_and_b32 v{T+3}, 0xffff0000, v{T+6+hh}")
            a(f"v_add_f32 v{T}, v{T}, v{T+2}")
            a(f"v_add_f32 v{T+1}, v{T+1}, v{T+3}")
            a(f"v_cvt_pk_bf16_f32 v{o+hh}, v{T}, v{T+1}")
        a(f"buffer_store_dwordx2 v[{o}:{o+1}], v171, s[76:79], 0 offen offset:{512*i}")

def gen_gemm(which, abl=(), PA=None, PB=None, VPG=None, BA=None):
    g1 = (which == 1)
    RING = 4 if g1 else 3
    AHEAD = RING - 1
    name = "gemm1_kernel" if g1 else "gemm2_kernel"
    RT = 4 if g1 else 2
    NM = 2 if g1 else 1
    KS = 2 if g1 else 4
    CT = 9
    PA = PA or (3 if g1 else 11)
    PB = PB or (2 if g1 else 6)
    VPG = VPG or (3 if g1 else 1)
    NSTEP = NST * KS
    FULLPRO = (not g1) or ('F' in abl)
    a = Asm()
    a.raw(kernel_header(name))
    a("s_cmp_ge_u32 s2, 256")
    a(f"s_cbranch_scc1 L_{name}_exit")
    if "T" in abl:
        a("s_memtime s[50:51]")
        a("s_memrealtime s[60:61]")
    a("s_load_dwordx4 s[4:7], s[0:1], 56")
    a("s_load_dwordx2 s[8:9], s[0:1], 72")
    a("s_load_dwordx2 s[10:11], s[0:1], 96")
    if not g1:
        a("s_load_dwordx4 s[44:47], s[0:1], 32")
    a("s_and_b32 s12, s2, 7")
    a("s_lshr_b32 s13, s2, 3")
    if g1:
        a("s_and_b32 s14, s13, 3")
        a("s_lshl_b32 s15, s12, 2")
        a("s_add_u32 s14, s14, s15")
        a("s_lshr_b32 s15, s13, 2")
    else:
        a("s_and_b32 s14, s13, 3")
        a("s_and_b32 s15, s12, 1")
        a("s_lshl_b32 s15, s15, 3")
        a("s_lshr_b32 s16, s13, 2")
        a("s_add_u32 s15, s15, s16")
        a("s_lshr_b32 s16, s12, 1")
    a("v_lshrrev_b32 v1, 6, v0")
    a("v_and_b32 v2, 63, v0")
    a("v_readfirstlane_b32 s17, v1")
    VD = 8
    rowbytes = 9216 if g1 else 1152
    a("s_mul_i32 s18, s14, 288")
    if not g1:
        a("s_mul_i32 s19, s16, %d" % (1152 * 1152))
        a("s_add_u32 s18, s18, s19")
    if g1:
        a("s_and_b32 s19, s17, 1")
    else:
        a("s_mov_b32 s19, s17")
    a("s_mul_i32 s19, s19, 576")
    a("s_movk_i32 s32, 3641")
    a("s_movk_i32 s33, 18")
    a(f"s_mov_b32 s34, {rowbytes}")
    for j in range(9):
        a(f"v_add_u32 v3, s19, v2")
        if j:
            a(f"v_add_u32 v3, {64*j}, v3")
        a("v_mul_lo_u32 v4, v3, s32")
        a("v_lshrrev_b32 v4, 16, v4")
        a("v_mul_lo_u32 v5, v4, s33")
        a("v_sub_u32 v5, v3, v5")
        if g1:
            a("v_and_b32 v6, 0xe3, v4")
            a("v_bfe_u32 v7, v4, 2, 2")
            a("v_lshl_add_u32 v6, v7, 3, v6")
            a("v_bfe_u32 v7, v4, 4, 1")
            a("v_lshl_add_u32 v4, v7, 2, v6")
        a("v_mul_lo_u32 v4, v4, s34")
        a("v_lshl_add_u32 v4, v5, 4, v4")
        a(f"v_add_u32 v{VD+j}, s18, v4")
    a("s_mul_i32 s35, s17, 9216")
    VA = 17
    if g1:
        a("s_lshl_b32 s36, s15, 4")
        a("s_lshl_b32 s37, s17, 2")
        a("s_add_u32 s36, s36, s37")
        a("s_mul_i32 s36, s36, 18432")
        astride = 18432
    else:
        a("s_lshl_b32 s36, s15, 3")
        a("s_lshl_b32 s37, s17, 1")
        a("s_add_u32 s36, s36, s37")
        a("s_mul_i32 s36, s36, 147456")
        a("s_mul_i32 s37, s16, 36864")
        a("s_add_u32 s36, s36, s37")
        astride = 147456
    a("v_lshlrev_b32 v3, 4, v2")
    a(f"v_add_u32 v{VA}, s36, v3")
    for rt in range(1, RT):
        a(f"v_add_u32 v{VA+rt}, {astride*rt}, v{VA}")
    VB = 21
    a("v_lshrrev_b32 v3, 4, v2")
    a("v_bfe_u32 v4, v2, 2, 2")
    a("v_lshl_add_u32 v3, v3, 2, v4")
    a("s_movk_i32 s37, 288")
    a("v_mul_lo_u32 v3, v3, s37")
    a("v_and_b32 v4, 3, v2")
    a(f"v_lshl_add_u32 v{VB}, v4, 3, v3")
    for s in range(1, RING):
        a(f"v_add_u32 v{VB+s}, {STAGE*s}, v{VB}")
    a("s_waitcnt lgkmcnt(0)")
    if not g1:
        a("s_cmp_ge_u32 s17, 4")
        a(f"s_cbranch_scc1 L_{name}_conv")
    if g1:
        a("s_cmp_ge_u32 s17, 2")
        a("s_cselect_b32 s20, s6, s4")
        a("s_cselect_b32 s21, s7, s5")
        a(f"s_mov_b32 s22, {NB_W}")
        a("s_mov_b32 s23, 0x00020000")
        make_srd(a, 24, 10, NB_ACT, add=WS_XNF)
        make_srd(a, 28, 10, NB_H, add=WS_H)
    else:
        make_srd(a, 20, 8, NB_W)
        make_srd(a, 24, 10, NB_H, add=WS_H)
        make_srd(a, 28, 10, NB_P, add=WS_P)
    if g1:
        make_srd(a, 88, 8, NB_W)
        a("s_lshr_b32 s92, s12, 1")
        a("s_mul_i32 s92, s92, 1327104")
        a("s_mul_i32 s93, s13, 41472")
        a("s_add_u32 s92, s92, s93")
        a("s_mul_i32 s93, s17, 10368")
        a("s_add_u32 s92, s92, s93")
        a("v_lshlrev_b32 v25, 4, v2")
        a("v_add_u32 v25, s92, v25")
    AF = 28
    NAF = (PA + 1) * RT * 4
    BF = AF + NAF
    NBF = (PB + 1) * NM * 4
    VACC = BF + NBF
    ntile = RT * CT * NM
    def acc(rt, ct, m):
        idx = (ct * NM + m) * RT + rt
        if idx < 64:
            return ("a", 4 * idx)
        return ("v", VACC + 4 * (idx - 64))
    def accs(rt, ct, m):
        k, b = acc(rt, ct, m)
        return f"{k}[{b}:{b+3}]"
    nvacc = max(0, ntile - 64) * 4
    VT = VACC + nvacc
    stage_stride = (64 * 9216) if g1 else (128 * 1152)

    def emit_dma(st, j):
        slot = st % RING
        a(f"s_add_u32 m0, s35, {slot*STAGE + j*1024}")
        a(f"s_mov_b32 s38, {st*stage_stride}")
        a.vmem(f"buffer_load_dwordx4 v{VD+j}, s[20:23], s38 offen lds", f"D{st}")
    def emit_aload(step, rt):
        b = AF + (step % (PA + 1)) * RT * 4 + rt * 4
        a(f"s_mov_b32 s39, {step*1024}")
        a.vmem(f"buffer_load_dwordx4 v[{b}:{b+3}], v{VA+rt}, s[24:27], s39 offen", f"A{step}")
    def emit_pf(i, _):
        a(f"s_movk_i32 s93, {i*1024}")
        a.vmem(f"buffer_load_dwordx4 v[{VT+20}:{VT+23}], v25, s[88:91], s93 offen", "PF")

    for j in range(9):
        emit_dma(0, j)
    for rt in range(RT):
        emit_aload(0, rt)
    queue = []
    def qa(t):
        return [("A", t, rt) for rt in range(RT)]
    def qd(s):
        return [("D", s, j) for j in range(9)]
    na1 = KS
    for t in range(1, min(PA, na1)):
        queue += qa(t)
    queue += qd(1)
    for t in range(max(1, min(PA, na1)), min(PA, 2*KS)):
        queue += qa(t)
    if AHEAD >= 3:
        queue += qd(2)
    for t in range(max(1, min(PA, 2*KS)), PA):
        queue += qa(t)
    if (not g1) and FULLPRO:
        for x in queue:
            (emit_aload if x[0] == "A" else emit_dma)(x[1], x[2])
        queue = []
    NG = NSTEP * CT
    def b_reads(G):
        step, ct = divmod(G, CT)
        st, ks = divmod(step, KS)
        slot = st % RING
        buf = BF + (G % (PB + 1)) * NM * 4
        out = []
        for m in range(NM):
            for half in range(2):
                off = m * 18432 + ks * 9216 + half * 4608 + ct * 32
                out.append(f"ds_read_b64_tr_b16 v[{buf+4*m+2*half}:{buf+4*m+2*half+1}], v{VB+slot} offset:{off}")
        return out
    a.wait_vm("D0")
    a("s_barrier")
    if "T" in abl:
        a("s_memtime s[52:53]")
        a("s_waitcnt lgkmcnt(0)")
    for G in range(PB):
        for ins in b_reads(G):
            a.lds(ins, f"B{G}")
    GPS = KS * CT
    BAR_AHEAD = BA or (PB + 1)
    issued = set()
    for G in range(NG):
        step, ct = divmod(G, CT)
        st = step // KS
        fill = []
        if ct == 0:
            while any(x[0] == "A" and x[1] == step for x in queue):
                x = queue.pop(0)
                {"A": emit_aload, "D": emit_dma, "P": emit_pf}[x[0]](x[1], x[2])
            a.wait_vm(f"A{step}")
            if step + PA < NSTEP:
                queue += qa(step + PA)
        nxt = st + 1
        if nxt < NST and G == nxt * GPS - BAR_AHEAD:
            while any(x[0] == "D" and x[1] == nxt for x in queue):
                x = queue.pop(0)
                {"A": emit_aload, "D": emit_dma, "P": emit_pf}[x[0]](x[1], x[2])
            a.wait_vm(f"D{nxt}")
            a("s_barrier")
            if st + AHEAD < NST:
                queue += qd(st + AHEAD)
            if g1 and st < 6:
                queue += [("P", 2*st, 0), ("P", 2*st+1, 0)][: (2 if st < 5 else 1)]
        if G + PB < NG:
            for ins in b_reads(G + PB):
                fill.append(("l", ins, f"B{G+PB}"))
        for _ in range(VPG):
            if queue:
                fill.append(queue.pop(0))
        a.wait_lg(f"B{G}")
        buf = BF + (G % (PB + 1)) * NM * 4
        abuf = AF + (step % (PA + 1)) * RT * 4
        mf = []
        for m in range(NM):
            for rt in range(RT):
                c = accs(rt, ct, m) if step > 0 else "0"
                mf.append(f"v_mfma_f32_16x16x32_bf16 {accs(rt,ct,m)}, v[{buf+4*m}:{buf+4*m+3}], v[{abuf+4*rt}:{abuf+4*rt+3}], {c}")
        per = -(-len(fill) // len(mf)) if fill else 0
        fi = 0
        for ins in mf:
            a(ins)
            for _ in range(per):
                if fi >= len(fill):
                    break
                f = fill[fi]; fi += 1
                if f[0] == "l":
                    a.lds(f[1], f[2])
                elif f[0] == "A":
                    emit_aload(f[1], f[2])
                elif f[0] == "D":
                    emit_dma(f[1], f[2])
                elif f[0] == "P":
                    emit_pf(f[1], f[2])
    assert not queue
    if "T" in abl:
        a("s_memtime s[54:55]")
        a("s_waitcnt lgkmcnt(0)")
    a("s_nop 7")
    a("s_nop 7")
    def stamp_end():
        if "T" not in abl: return
        a("s_memtime s[56:57]")
        a("s_waitcnt vmcnt(0) lgkmcnt(0)")
        a("s_memtime s[58:59]")
        a("s_memrealtime s[62:63]")
        a("s_waitcnt lgkmcnt(0)")
        for x in (52, 54, 56, 58):
            a(f"s_sub_u32 s{x}, s{x}, s50")
        a("s_sub_u32 s62, s62, s60")
        make_srd(a, 64, 10, 1<<20, add=(56<<20) + (which<<20))
        for i, x in enumerate((52, 54, 56, 58, 62, 80, 82, 84)):
            a(f"v_mov_b32 v{4+i}, s{x}")
        a("s_lshl_b32 s70, s2, 2")
        a("s_add_u32 s70, s70, s17")
        a("s_lshl_b32 s70, s70, 5")
        a("v_mov_b32 v3, s70")
        a("buffer_store_dwordx4 v[4:7], v3, s[64:67], 0 offen")
        a("buffer_store_dwordx4 v[8:11], v3, s[64:67], 0 offen offset:16")
    def rd(dst, rt, ct, m):
        k, b = acc(rt, ct, m)
        if k == "a":
            for r in range(4):
                a(f"v_accvgpr_read_b32 v{dst+r}, a{b+r}")
            return dst
        return b
    if g1:
        a("s_lshl_b32 s36, s15, 4")
        a("s_lshl_b32 s37, s17, 2")
        a("s_add_u32 s36, s36, s37")
        a("s_mul_i32 s36, s36, 147456")
        a("s_mul_i32 s37, s14, 9")
        a("s_lshr_b32 s40, s37, 1")
        a("s_lshl_b32 s40, s40, 10")
        a("s_add_u32 s36, s36, s40")
        a("v_lshlrev_b32 v3, 4, v2")
        a("v_add_u32 v3, s36, v3")
        a("s_and_b32 s37, s37, 1")
        a("s_cmp_eq_u32 s37, 1")
        a(f"s_cbranch_scc1 L_{name}_odd")
        for par in range(2):
            if par == 1:
                a.label(f"L_{name}_odd")
            ob = 0
            for rt in range(RT):
                for ct in range(CT):
                    T = par + ct
                    half = T & 1
                    OB = VT + 16 + 4 * ob
                    o = OB + 2 * half
                    g = rd(VT, rt, ct, 0)
                    u = rd(VT + 4, rt, ct, 1)
                    a(f"v_cvt_pk_bf16_f32 v{VT+8}, v{g}, v{g+1}")
                    a(f"v_cvt_pk_bf16_f32 v{VT+9}, v{g+2}, v{g+3}")
                    a(f"v_cvt_pk_bf16_f32 v{VT+10}, v{u}, v{u+1}")
                    a(f"v_cvt_pk_bf16_f32 v{VT+11}, v{u+2}, v{u+3}")
                    for hh in range(2):
                        a(f"v_lshlrev_b32 v{VT}, 16, v{VT+8+hh}")
                        a(f"v_and_b32 v{VT+1}, 0xffff0000, v{VT+8+hh}")
                        a(f"v_lshlrev_b32 v{VT+2}, 16, v{VT+10+hh}")
                        a(f"v_and_b32 v{VT+3}, 0xffff0000, v{VT+10+hh}")
                        a(f"v_pk_mul_f32 v[{VT}:{VT+1}], v[{VT}:{VT+1}], v[{VT+2}:{VT+3}]")
                        a(f"v_cvt_pk_bf16_f32 v{o+hh}, v{VT}, v{VT+1}")
                    kb = T >> 1
                    a(f"s_mov_b32 s41, {rt*147456 + kb*1024}")
                    if half == 1 and ct > 0:
                        a.vmem(f"buffer_store_dwordx4 v[{OB}:{OB+3}], v3, s[28:31], s41 offen sc1")
                        ob ^= 1
                    elif half == 1 and ct == 0:
                        a.vmem(f"buffer_store_dwordx2 v[{OB+2}:{OB+3}], v3, s[28:31], s41 offen offset:8 sc1")
                        ob ^= 1
                    elif half == 0 and ct == CT - 1:
                        a.vmem(f"buffer_store_dwordx2 v[{OB}:{OB+1}], v3, s[28:31], s41 offen sc1")
                        ob ^= 1
            stamp_end()
            a("s_endpgm")
    else:
        a("s_lshl_b32 s36, s16, 7")
        a("s_lshl_b32 s37, s15, 3")
        a("s_add_u32 s36, s36, s37")
        a("s_lshl_b32 s37, s17, 1")
        a("s_add_u32 s36, s36, s37")
        a("s_mul_i32 s36, s36, 36864")
        a("s_mul_i32 s37, s14, 9216")
        a("s_add_u32 s36, s36, s37")
        a("v_lshlrev_b32 v3, 4, v2")
        a("v_add_u32 v3, s36, v3")
        for rt in range(RT):
            for ct in range(CT):
                k, b = acc(rt, ct, 0)
                off = rt * 36864 + ct * 1024
                a(f"s_mov_b32 s41, {off}")
                a.vmem(f"buffer_store_dwordx4 {k}[{b}:{b+3}], v3, s[28:31], s41 offen sc1")
        stamp_end()
        a("s_endpgm")
        a.label(f"L_{name}_conv")
        a.vm = []; a.lg = []
        a("s_cmp_ge_u32 s2, 144")
        a(f"s_cbranch_scc1 L_{name}_exit")
        a("s_sub_u32 s17, s17, 4")
        a("s_barrier")
        conv_dma(a)
        a("s_barrier")
        conv_compute(a, False, None, barriers=True)
        a("s_endpgm")
    a.label(f"L_{name}_exit")
    a("s_endpgm")
    nv = VT + 24
    nv = (nv + 3) // 4 * 4
    nacc = min(ntile, 64) * 4
    lds = STAGE * RING
    blk = 256
    if not g1:
        assert nv <= 176
        nv, nacc, lds, blk = 176, 80, 163840, 512
    return a.text(), kernel_desc(name, nv + nacc, 96, nv), f"; @launch kernel={name} grid=(256,1,1) block=({blk},1,1) lds={lds}"
```

```python
import sys
from build import build
import gen_prep3, gen_gemm7, gen_final2
for tpw in (2, 3, 4):
    parts = [gen_prep3.gen_prep(pf_wd=False), gen_gemm7.gen_gemm(1, ()), gen_gemm7.gen_gemm(2, ()), gen_final2.gen_final(tpw)]
    build(parts, f"v10_{tpw}.s")
```
